```python
import torch

def _softmax(x, axis=-1):
    return torch.softmax(x, dim=axis)
def _gelu(x):
    return torch.nn.functional.gelu(x, approximate="tanh")
def _silu(x):
    return torch.nn.functional.silu(x)
def _sigmoid(x):
    return torch.sigmoid(x)
def _layernorm(x, axis=-1, eps=1e-5):
    m = x.mean(dim=axis, keepdim=True)
    v = x.var(dim=axis, keepdim=True, unbiased=False)
    return (x - m) / torch.sqrt(v + eps)
def _scatter_add(tgt, idx, src, axis=0):
    return tgt.clone().index_add_(axis, idx, src)
def _segment_sum(src, seg, n):
    out = torch.zeros((n,) + src.shape[1:], dtype=src.dtype)
    return out.index_add_(0, seg, src)
def _pad(x, pw):
    flat = tuple(v for pair in reversed(pw) for v in pair)
    return torch.nn.functional.pad(x, flat)

kernel_name = 'sequential_preLN__ssm_conv_s4d__dense_activation_relu__prompt'

def setup_inputs():

    _w = (lambda a: (lambda t: t.to(torch.bfloat16) if t.is_floating_point() else t)(torch.as_tensor(a)))
    def _A_setup():
        Bsz, L, D, N = 1, 2048, 512, 128
        return {
            "u": _w((lambda *s: torch.randn(*s, dtype=torch.bfloat16) * 0.05)(Bsz, L, D)),
            "log_A_real": _w((lambda *s: torch.randn(*s, dtype=torch.bfloat16) * 6.4)(D, N) * 0.5),
            "A_imag": _w((lambda *s: torch.randn(*s, dtype=torch.bfloat16) * 0.05)(D, N) * 3.14),
            "C_real": _w((lambda *s: torch.randn(*s, dtype=torch.bfloat16) * 0.05)(D, N) / N ** 0.5),
            "C_imag": _w((lambda *s: torch.randn(*s, dtype=torch.bfloat16) * 0.05)(D, N) / N ** 0.5),
            "log_dt": _w((lambda *s: torch.randn(*s, dtype=torch.bfloat16) * 0.05)(D) * 0.5 - 4.0),
            "D_skip": _w((lambda *s: torch.randn(*s, dtype=torch.bfloat16) * 0.05)(D)),
        }
    _A_in = _A_setup()

    def _B_setup():
        B, S, D, Dff = 1, 2048, 512, 1792
        return {
            "x": _w((lambda *s: torch.randn(*s, dtype=torch.bfloat16) * 0.05)(B, S, D)),
            "w1": _w((lambda *s: torch.randn(*s, dtype=torch.bfloat16) * 0.05)(D, Dff)),
            "w2": _w((lambda *s: torch.randn(*s, dtype=torch.bfloat16) * 0.05)(Dff, D)),
        }
    _B_in = _B_setup()

    return {
        "A_u": _A_in["u"],
        "A_log_A_real": _A_in["log_A_real"],
        "A_A_imag": _A_in["A_imag"],
        "A_C_real": _A_in["C_real"],
        "A_C_imag": _A_in["C_imag"],
        "A_log_dt": _A_in["log_dt"],
        "A_D_skip": _A_in["D_skip"],
        "B_x": _B_in["x"],
        "B_w1": _B_in["w1"],
        "B_w2": _B_in["w2"],
    }

def reference(A_u, A_log_A_real, A_A_imag, A_C_real, A_C_imag, A_log_dt, A_D_skip, B_x, B_w1, B_w2):
    def _A_ref(u, log_A_real, A_imag, C_real, C_imag, log_dt, D_skip):
        L = u.shape[1]
        dt = torch.exp(log_dt)
        A = -torch.exp(log_A_real) + 1j * A_imag
        C = (C_real + 1j * C_imag) * dt[:, None]
        pos = (lambda x, dt: x.to(dt))(torch.arange(L), log_dt.dtype)
        P = torch.exp((A * dt[:, None])[:, :, None] * pos[None, None, :])
        K = 2.0 * torch.einsum("dn,dnl->dl", C, P).real
        L2 = 2 * L
        u_t = (lambda x, *d: x.permute(*d))(u, 0, 2, 1)
        Kf = (lambda x, *a, **k: torch.fft.rfft(x.float(), *a, **k))(K, L2)
        Uf = (lambda x, *a, **k: torch.fft.rfft(x.float(), *a, **k))(u_t, L2)
        y = (lambda x, *a, **k: torch.fft.irfft(x, *a, **k).to(torch.bfloat16))(Uf * Kf[None, :, :], L2)[:, :, :L]
        y = (lambda x, *d: x.permute(*d))(y, 0, 2, 1)
        return y + u * D_skip[None, None, :]

    def _B_ref(x, w1, w2):
        h = torch.einsum("bsd,df->bsf", x, w1)
        zero = torch.zeros_like(h)
        h = torch.maximum(h, zero)
        return torch.einsum("bsf,fd->bsd", h, w2)

    x = A_u
    h = x + _A_ref(_layernorm(x, axis=-1), A_log_A_real, A_A_imag, A_C_real, A_C_imag, A_log_dt, A_D_skip)
    h2 = h + _B_ref(_layernorm(h, axis=-1), B_w1, B_w2)
    return h2
```

```python
class Asm:
    def __init__(self):
        self.lines = []
        self._lbl = 0
    def __call__(self, s=""):
        for ln in s.split("\n"):
            ln = ln.strip()
            if ln:
                self.lines.append(("    " + ln) if not ln.endswith(":") else ln)
    def c(self, s):
        self.lines.append("    ; " + s)
    def label(self, name):
        self.lines.append(name + ":")
    def newlabel(self, p="L"):
        self._lbl += 1
        return f"{p}_{self._lbl}"
    def nop(self, n):
        while n > 0:
            k = min(n, 16)
            self(f"s_nop {k-1}")
            n -= k
    def text(self):
        return "\n".join(self.lines) + "\n"

def v(i, n=1):
    return f"v{i}" if n == 1 else f"v[{i}:{i+n-1}]"
def a(i, n=1):
    return f"a{i}" if n == 1 else f"a[{i}:{i+n-1}]"
def s(i, n=1):
    return f"s{i}" if n == 1 else f"s[{i}:{i+n-1}]"

import struct
def f32bits(x):
    return struct.unpack("<I", struct.pack("<f", x))[0]
def fhex(x):
    return "0x%08x" % f32bits(x)

def srd(A, d, base, nbytes, off=0):
    if off:
        A(f"s_add_u32 s{d}, s{base}, 0x{off:x}")
        A(f"s_addc_u32 s{d+1}, s{base+1}, 0")
    else:
        A(f"s_mov_b32 s{d}, s{base}")
        A(f"s_mov_b32 s{d+1}, s{base+1}")
    A(f"s_mov_b32 s{d+2}, 0x{nbytes:x}")
    A(f"s_mov_b32 s{d+3}, 0x00020000")

def kernel_begin(A, name):
    A.lines.append(f".globl {name}")
    A.lines.append(".p2align 8")
    A.lines.append(f".type {name},@function")
    A.label(name)

def kernel_desc(name, vgpr, sgpr=102, accum=None):
    if accum is None:
        accum = (vgpr + 3) // 4 * 4
    return f""".p2align 6
.amdhsa_kernel {name}
  .amdhsa_next_free_vgpr {vgpr}
  .amdhsa_next_free_sgpr {sgpr}
  .amdhsa_accum_offset {accum}
  .amdhsa_group_segment_fixed_size 0
  .amdhsa_kernarg_size 104
  .amdhsa_user_sgpr_count 2
  .amdhsa_user_sgpr_kernarg_segment_ptr 1
  .amdhsa_system_sgpr_workgroup_id_x 1
.end_amdhsa_kernel
"""
```

```python
from asmlib import *
import math
WS_XT = 0x000000
WS_HT = 0x200000
WS_KC = 0x400000
WS_SC = 0x500000
WS_MS = 0x501000
WS_CS = 0x506000
WS_HH = 0x600000
WS_TS = 0xF00000
WS_SIZE = 268435456

S_X, S_LAR, S_AIM, S_CR, S_CI, S_LDT, S_DSK, S_BX = 16, 18, 20, 22, 24, 26, 28, 30
S_W1, S_W2, S_OUT, S_DBG, S_WS = 32, 34, 36, 38, 40

def load_kernargs(A):
    A("s_load_dwordx16 s[16:31], s[0:1], 0")
    A("s_load_dwordx8 s[32:39], s[0:1], 64")
    A("s_load_dwordx2 s[40:41], s[0:1], 96")

L2E = 1.4426950408889634
import numpy as np
L2E_HI = float(np.float32(L2E))
L2E_LO = L2E - L2E_HI
LN2 = 0.6931471805599453

def wave_reduce(A, regs, op="v_add_f32"):
    steps = ["row_shr:1 row_mask:0xf bank_mask:0xf bound_ctrl:0",
             "row_shr:2 row_mask:0xf bank_mask:0xf bound_ctrl:0",
             "row_shr:4 row_mask:0xf bank_mask:0xf bound_ctrl:0",
             "row_shr:8 row_mask:0xf bank_mask:0xf bound_ctrl:0",
             "row_bcast:15 row_mask:0xa bank_mask:0xf",
             "row_bcast:31 row_mask:0xc bank_mask:0xf"]
    pad = max(0, 2 - (len(regs) - 1))
    A.nop(2)
    for st in steps:
        for r in regs:
            A(f"{op}_dpp v{r}, v{r}, v{r} {st}")
        A.nop(pad)

def stamp(A, slot, idx, sreg=90, diag=False):
    if not diag:
        return
    A(f"s_memrealtime s[{sreg}:{sreg+1}]")
    A(f"s_lshl_b32 s{sreg+2}, s2, 6")
    A(f"s_add_u32 s{sreg+2}, s{sreg+2}, 0x{WS_TS + slot*65536 + idx*8:x}")
    A(f"s_add_u32 s{sreg+4}, s{S_WS}, s{sreg+2}")
    A(f"s_addc_u32 s{sreg+5}, s{S_WS+1}, 0")
    A("s_waitcnt lgkmcnt(0)")
    A(f"v_mov_b32 v{diag}, s{sreg}")
    A(f"v_mov_b32 v{diag+1}, s{sreg+1}")
    A(f"v_mov_b32 v{diag+2}, 0")
    A(f"s_mov_b64 s[{sreg+6}:{sreg+7}], exec")
    A("s_mov_b64 exec, 1")
    A(f"global_store_dwordx2 v{diag+2}, v[{diag}:{diag+1}], s[{sreg+4}:{sreg+5}]")
    A(f"s_mov_b64 exec, s[{sreg+6}:{sreg+7}]")
```

```python
from common import *

K1_LDS = 4 * 64 * 272
XROW = 272

def cmul(A, d, x, y):
    return [f"v_pk_mul_f32 v[{d}:{d+1}], v[{x}:{x+1}], v[{y}:{y+1}] op_sel:[0,0] op_sel_hi:[1,0]",
            f"v_pk_fma_f32 v[{d}:{d+1}], v[{x}:{x+1}], v[{y}:{y+1}], v[{d}:{d+1}] op_sel:[1,1,0] op_sel_hi:[0,1,1] neg_lo:[0,1,0]"]

def slot_base(hh, j):
    if j < 8:
        return j if hh == 0 else 256 + [0, 0, 2, 4, 4, 4, 6, 8][j]
    if j < 11:
        return (512 if hh == 0 else 768) + [0, 4, 8][j - 8]
    if j < 13:
        return (1024 if hh == 0 else 1536) + [0, 8][j - 11]
    if j < 15:
        return (1280 if hh == 0 else 1792) + [0, 8][j - 13]
    return 0
def rows_of_base(b):
    return [8 * (j // 4) + 4 * hh + (j % 4) for hh in range(2) for j in range(16) if slot_base(hh, j) == b]

def exp_bf16(A, x, t, e, s_l2e, s_l2elo, s_ln2):
    A(f"v_mul_f32 v{t}, s{s_l2e}, v{x}")
    A(f"v_fma_f32 v{e}, v{x}, s{s_l2e}, -v{t}")
    A(f"v_fma_f32 v{e}, v{x}, s{s_l2elo}, v{e}")
    A(f"v_exp_f32 v{t}, v{t}")
    A(f"v_mul_f32 v{e}, s{s_ln2}, v{e}")
    A(f"v_fma_f32 v{t}, v{t}, v{e}, v{t}")
    A(f"v_cvt_pk_bf16_f32 v{t}, v{t}, v{t}")
    A(f"v_lshlrev_b32 v{x}, 16, v{t}")

def gen_k1(A, name, diag=False):
    kernel_begin(A, name)
    load_kernargs(A)
    A("v_and_b32 v1, 63, v0")
    A("v_lshrrev_b32 v2, 6, v0")
    A("s_cmp_ge_u32 s2, 284")
    A("s_cbranch_scc1 K1_END")
    A("v_readfirstlane_b32 s5, v2")
    A("s_cmp_ge_u32 s2, 256")
    A("s_cbranch_scc1 K1_COLSUM")
    A("s_nop 1")
    A("s_cmp_ge_u32 s5, 4")
    A("s_cbranch_scc1 K1_KGEN")
    A("s_lshl_b32 s3, s2, 13")
    A("s_add_u32 s4, s3, 4096")
    A("v_lshlrev_b32 v3, 11, v2")
    A("v_lshl_add_u32 v3, v1, 4, v3")
    A("v_lshlrev_b32 v4, 2, v0")
    A("s_waitcnt lgkmcnt(0)")
    stamp(A, 0, 0, diag=diag)
    srd(A, 8, S_X, 2048 * 512 * 2)
    srd(A, 12, S_WS, WS_SIZE)
    A("buffer_load_dwordx4 v[8:11], v3, s[8:11], s3 offen")
    A("buffer_load_dwordx4 v[12:15], v3, s[8:11], s3 offen offset:1024")
    for r in range(8):
        A(f"buffer_load_dword v{16+r}, v4, s[8:11], s{3 if r < 4 else 4} offen offset:{(r % 4) * 1024}")
    A("s_mov_b32 s6, 0x05040100")
    A("s_mov_b32 s7, 0x07060302")
    A("v_lshlrev_b32 v5, 5, v0")
    A("s_waitcnt vmcnt(8)")
    for row in range(2):
        for i in range(4):
            A(f"v_lshlrev_b32 v{24+8*row+2*i}, 16, v{8+4*row+i}")
            A(f"v_and_b32 v{24+8*row+2*i+1}, 0xffff0000, v{8+4*row+i}")
    for row in range(2):
        b = 24 + 8 * row
        A(f"v_add_f32 v{40+row}, v{b}, v{b+1}")
        A(f"v_add_f32 v{42+row}, v{b+2}, v{b+3}")
        A(f"v_add_f32 v{44+row}, v{b+4}, v{b+5}")
        A(f"v_add_f32 v{46+row}, v{b+6}, v{b+7}")
    for row in range(2):
        A(f"v_add_f32 v{40+row}, v{40+row}, v{42+row}")
        A(f"v_add_f32 v{44+row}, v{44+row}, v{46+row}")
    for row in range(2):
        A(f"v_add_f32 v{40+row}, v{40+row}, v{44+row}")
    wave_reduce(A, [40, 41])
    for row in range(2):
        A(f"v_mul_f32 v{40+row}, {fhex(1/512)}, v{40+row}")
    A("s_nop 0")
    A("v_readlane_b32 s42, v40, 63")
    A("v_readlane_b32 s43, v41, 63")
    A("s_waitcnt vmcnt(0)")
    for j in range(4):
        A(f"v_perm_b32 v{48+j}, v{16+2*j+1}, v{16+2*j}, s6")
        A(f"v_perm_b32 v{52+j}, v{16+2*j+1}, v{16+2*j}, s7")
    if WS_XT:
        A(f"s_add_u32 s44, s3, 0x{WS_XT:x}")
    else:
        A("s_mov_b32 s44, s3")
    A("buffer_store_dwordx4 v[48:51], v5, s[12:15], s44 offen")
    A("buffer_store_dwordx4 v[52:55], v5, s[12:15], s44 offen offset:16")
    for row in range(2):
        b = 24 + 8 * row
        for i in range(8):
            A(f"v_subrev_f32 v{b+i}, s{42+row}, v{b+i}")
    for row in range(2):
        b = 24 + 8 * row
        A(f"v_mul_f32 v{42+row}, v{b}, v{b}")
        A(f"v_mul_f32 v{44+row}, v{b+1}, v{b+1}")
    for i in range(2, 8, 2):
        for row in range(2):
            b = 24 + 8 * row
            A(f"v_fmac_f32 v{42+row}, v{b+i}, v{b+i}")
            A(f"v_fmac_f32 v{44+row}, v{b+i+1}, v{b+i+1}")
    for row in range(2):
        A(f"v_add_f32 v{42+row}, v{42+row}, v{44+row}")
    wave_reduce(A, [42, 43])
    for row in range(2):
        A(f"v_mul_f32 v{42+row}, {fhex(1/512)}, v{42+row}")
    A("v_cvt_pk_bf16_f32 v44, v40, v41")
    A("v_cvt_pk_bf16_f32 v45, v42, v43")
    A("v_lshlrev_b32 v56, 16, v44")
    A("v_and_b32 v58, 0xffff0000, v44")
    A("v_lshlrev_b32 v42, 16, v45")
    A("v_and_b32 v43, 0xffff0000, v45")
    A(f"v_add_f32 v42, {fhex(1e-5)}, v42")
    A(f"v_add_f32 v43, {fhex(1e-5)}, v43")
    A("v_cvt_pk_bf16_f32 v45, v42, v43")
    A("v_lshlrev_b32 v42, 16, v45")
    A("v_and_b32 v43, 0xffff0000, v45")
    A("v_sqrt_f32 v42, v42")
    A("v_sqrt_f32 v43, v43")
    A("s_nop 0")
    A("v_cvt_pk_bf16_f32 v45, v42, v43")
    A("v_lshlrev_b32 v42, 16, v45")
    A("v_and_b32 v43, 0xffff0000, v45")
    A("v_rcp_f32 v57, v42")
    A("v_rcp_f32 v59, v43")
    A("v_lshlrev_b32 v6, 4, v2")
    A("s_lshl_b32 s44, s2, 6")
    A(f"s_add_u32 s44, s44, 0x{WS_MS:x}")
    A("s_mov_b32 exec_lo, 0")
    A("s_mov_b32 exec_hi, 0x80000000")
    A("buffer_store_dwordx4 v[56:59], v6, s[12:15], s44 offen")
    A("s_mov_b64 exec, -1")
    if diag:
        A("s_waitcnt vmcnt(0)")
    stamp(A, 0, 1, diag=diag)
    A("s_endpgm")

    A.label("K1_KGEN")
    A("s_sub_u32 s5, s5, 4")
    A("s_lshr_b32 s6, s5, 1")
    A("s_and_b32 s7, s5, 1")
    A("s_lshl_b32 s3, s2, 1")
    A("s_add_u32 s3, s3, s6")
    A("s_lshl_b32 s4, s3, 8")
    A("s_lshl_b32 s44, s7, 7")
    A("v_lshlrev_b32 v3, 1, v1")
    A("v_add_u32 v3, s44, v3")
    A("v_xor_b32 v4, 128, v3")
    A("s_lshl_b32 s45, s2, 2")
    A("s_waitcnt lgkmcnt(0)")
    A(f"s_load_dword s46, s[{S_LDT}:{S_LDT+1}], s45")
    srd(A, 8, S_LAR, 512 * 128 * 2)
    srd(A, 48, S_AIM, 512 * 128 * 2)
    srd(A, 52, S_CR, 512 * 128 * 2)
    srd(A, 56, S_CI, 512 * 128 * 2)
    srd(A, 12, S_WS, WS_SIZE)
    A("buffer_load_ushort v8, v3, s[8:11], s4 offen")
    A("buffer_load_ushort v9, v3, s[48:51], s4 offen")
    A("buffer_load_ushort v10, v3, s[52:55], s4 offen")
    A("buffer_load_ushort v11, v3, s[56:59], s4 offen")
    A("buffer_load_ushort v12, v4, s[52:55], s4 offen")
    A("buffer_load_ushort v13, v4, s[56:59], s4 offen")
    A(f"s_mov_b32 s60, {fhex(L2E_HI)}")
    A(f"s_mov_b32 s61, {fhex(L2E_LO)}")
    A(f"s_mov_b32 s62, {fhex(LN2)}")
    A(f"s_mul_i32 s63, s5, {64*XROW}")
    A("v_lshlrev_b32 v5, 2, v1")
    A("v_add_u32 v5, s63, v5")
    A("v_and_b32 v6, 31, v1")
    A(f"v_mul_u32_u24 v6, {XROW}, v6")
    A("v_lshrrev_b32 v7, 5, v1")
    A("v_lshl_add_u32 v6, v7, 4, v6")
    A("v_add_u32 v6, s63, v6")
    A("s_waitcnt lgkmcnt(0)")
    A("s_lshl_b32 s47, s46, 16")
    A("s_and_b32 s46, s46, 0xffff0000")
    A("s_cmp_eq_u32 s6, 0")
    A("s_cselect_b32 s46, s47, s46")
    A("v_mov_b32 v14, s46")
    exp_bf16(A, 14, 15, 16, 60, 61, 62)
    A("s_waitcnt vmcnt(0)")
    A("v_and_b32 v15, 0x7fff, v10")
    A("v_and_b32 v16, 0x7fff, v11")
    A("v_and_b32 v17, 0x7fff, v12")
    A("v_and_b32 v18, 0x7fff, v13")
    A("v_max_u32 v15, v15, v16")
    A("v_max_u32 v17, v17, v18")
    A("v_max_u32 v15, v15, v17")
    A("v_lshlrev_b32 v8, 16, v8")
    A("v_lshlrev_b32 v9, 16, v9")
    wave_reduce(A, [15], op="v_max_u32")
    exp_bf16(A, 8, 16, 17, 60, 61, 62)
    A("v_readlane_b32 s46, v15, 63")
    A("v_mul_f32 v8, v8, v14")
    A("v_mul_f32 v9, v9, v14")
    A("v_lshlrev_b32 v10, 16, v10")
    A("v_lshlrev_b32 v11, 16, v11")
    A("s_lshr_b32 s46, s46, 7")
    A("s_min_u32 s46, s46, 253")
    A("s_max_u32 s46, s46, 1")
    A("s_sub_u32 s47, 254, s46")
    A("s_lshl_b32 s47, s47, 23")
    A("s_lshl_b32 s46, s46, 23")
    Z1, Z8, Z256, Z2, Z4, Z32, C0 = 20, 22, 24, 26, 28, 30, 32
    for (z, p) in ((Z1, 1), (Z8, 8), (Z256, 256)):
        A(f"v_mul_f32 v{40+z}, {fhex(-p*L2E)}, v8")
        A(f"v_mul_f32 v{41+z}, {fhex(p/(2*math.pi))}, v9")
    for (z, p) in ((Z1, 1), (Z8, 8), (Z256, 256)):
        A(f"v_exp_f32 v{40+z}, v{40+z}")
        A(f"v_fract_f32 v{41+z}, v{41+z}")
    for (z, p) in ((Z1, 1), (Z8, 8), (Z256, 256)):
        A(f"v_cos_f32 v{z}, v{41+z}")
        A(f"v_sin_f32 v{z+1}, v{41+z}")
    A(f"v_mul_f32 v{C0}, s47, v10")
    A(f"v_mul_f32 v{C0+1}, s47, v11")
    for (z, p) in ((Z1, 1), (Z8, 8), (Z256, 256)):
        A(f"v_mul_f32 v{z}, v{z}, v{40+z}")
        A(f"v_mul_f32 v{z+1}, v{z+1}, v{40+z}")
    A("v_mul_f32 v16, s46, v14")
    A("v_add_f32 v16, v16, v16")
    reg = {}
    free = list(range(34, 100, 2))
    def newpair(nm):
        reg[nm] = free.pop(0)
        return reg[nm]
    reg.update({"z1": Z1, "z8": Z8, "z256": Z256, "z2": Z2, "z4": Z4, "z32": Z32, "x0": C0, "y1": Z8})
    Xops = [("z2", "z1", "z1"), ("x1", "x0", "z1"), ("z4", "z2", "z2"), ("x256", "x0", "z256"),
            ("x2", "x0", "z2"), ("x3", "x1", "z2"), ("x512", "x256", "z256"), ("x4", "x0", "z4"), ("x5", "x1", "z4"),
            ("x6", "x2", "z4"), ("x7", "x3", "z4"), ("x768", "x512", "z256"),
            ("x258", "x256", "z2"), ("x260", "x256", "z4"), ("x264", "x256", "z8"), ("x1024", "x768", "z256"), ("x262", "x258", "z4"),
            ("x516", "x512", "z4"), ("x520", "x512", "z8"), ("x1280", "x1024", "z256"), ("x772", "x768", "z4"), ("x776", "x768", "z8"),
            ("x1536", "x1280", "z256"), ("x1032", "x1024", "z8"), ("x1288", "x1280", "z8"), ("x1792", "x1536", "z256"),
            ("x1544", "x1536", "z8"), ("x1800", "x1792", "z8")]
    Yops = [("y2", "y1", "y1"), ("y3", "y2", "y1"), ("z32", "y2", "y2")]
    for o in range(5, 32):
        Yops.append((f"y{o}", f"y{o-4}" if o - 4 != 4 else "z32", "z32"))
    cv = [104]
    def emit_out(nm):
        r = reg[nm]
        t = cv[0]; cv[0] = 104 + (cv[0] - 104 + 1) % 8
        out = []
        if nm[0] == "x":
            out.append(f"v_cvt_pk_f16_f32 v{t}, v{r}, -v{r+1}")
            for row in rows_of_base(int(nm[1:])):
                out.append(f"ds_write_b32 v5, v{t} offset:{row*XROW}")
        else:
            o = 4 if nm == "z32" else int(nm[1:])
            out.append(f"v_cvt_pk_f16_f32 v{t}, v{r}, v{r+1}")
            out.append(f"ds_write_b32 v5, v{t} offset:{(32+o)*XROW}")
        return out
    A("v_mov_b32 v112, 0x00003c00")
    A(f"ds_write_b32 v5, v112 offset:{32*XROW}")
    for ln in emit_out("x0") + emit_out("y1"):
        A(ln)
    ops = []
    i = j = 0
    while i < len(Xops) or j < len(Yops):
        if i < len(Xops): ops.append(Xops[i]); i += 1
        if j < len(Yops): ops.append(Yops[j]); j += 1
    pend = []
    lastuse = {}
    for k, (d, x, y) in enumerate(ops):
        lastuse[x] = k // 2; lastuse[y] = k // 2
        lastuse.setdefault(d, k // 2)
    fixed = set(reg.keys())
    for k in range(0, len(ops), 2):
        grp = ops[k:k+2]
        code = []
        for (d, x, y) in grp:
            if d not in reg: newpair(d)
            code.append(cmul(A, reg[d], reg[x], reg[y]))
        for c in code: A(c[0])
        for ln in pend: A(ln)
        pend = []
        for c in code: A(c[1])
        for (d, x, y) in grp:
            if d[0] in "xy" or d == "z32":
                pend += emit_out(d)
        for nm in list(reg.keys()):
            if nm not in fixed and lastuse[nm] <= k // 2 - 1:
                free.append(reg.pop(nm))
    A("s_nop 0")
    for ln in pend: A(ln)
    A("s_waitcnt lgkmcnt(0)")
    D = 100
    def rd(st):
        A(f"ds_read_b128 v[{34+8*st}:{34+8*st+3}], v6 offset:{32*st}")
        A(f"ds_read_b128 v[{38+8*st}:{38+8*st+3}], v6 offset:{32*XROW+32*st}")
    for st in range(6):
        rd(st)
    for st in range(8):
        issued = min(8, 6 + st)
        A(f"s_waitcnt lgkmcnt({2*(issued-st-1)})")
        cin = "0" if st == 0 else f"v[{D}:{D+15}]"
        A(f"v_mfma_f32_32x32x16_f16 v[{D}:{D+15}], v[{34+8*st}:{34+8*st+3}], v[{38+8*st}:{38+8*st+3}], {cin}")
        if st + 6 < 8:
            rd(st + 6)
    A("v_lshlrev_b32 v7, 4, v1")
    A("v_add_u32 v17, s63, v7")
    A(f"s_xor_b32 s44, s5, 1")
    A(f"s_mul_i32 s44, s44, {64*XROW}")
    A("v_add_u32 v18, s44, v7")
    A("s_lshl_b32 s44, s3, 11")
    A("s_lshl_b32 s45, s7, 10")
    A("s_add_u32 s44, s44, s45")
    A(f"s_add_u32 s44, s44, 0x{WS_KC:x}")
    A("s_lshl_b32 s45, s3, 2")
    A(f"s_add_u32 s45, s45, 0x{WS_SC:x}")
    A.nop(4)
    A("s_cmp_eq_u32 s7, 0")
    A("s_cbranch_scc0 K1_H1")
    for hv, lab in ((0, None), (1, "K1_H1")):
        if lab: A.label(lab)
        keep = D + 8 * hv
        send = D + 8 * (1 - hv)
        A(f"ds_write_b128 v17, v[{send}:{send+3}]")
        A(f"ds_write_b128 v17, v[{send+4}:{send+7}] offset:1024")
        A("s_waitcnt lgkmcnt(0)")
        A("s_barrier")
        A("ds_read_b128 v[34:37], v18")
        A("ds_read_b128 v[38:41], v18 offset:1024")
        A("s_waitcnt lgkmcnt(0)")
        for i in range(8):
            A(f"v_add_f32 v{34+i}, v{34+i}, v{keep+i}")
        for i in range(4):
            A(f"v_cvt_pk_f16_f32 v{44+i}, v{34+2*i}, v{35+2*i}")
        A("buffer_store_dwordx4 v[44:47], v7, s[12:15], s44 offen")
        if hv == 0:
            A("s_mov_b64 exec, 1")
            A("buffer_store_dword v16, off, s[12:15], s45")
        A("s_endpgm")

    A.label("K1_COLSUM")
    A("s_sub_u32 s3, s2, 256")
    A("s_lshl_b32 s3, s3, 7")
    A("v_and_b32 v3, 7, v0")
    A("v_lshrrev_b32 v4, 3, v0")
    A(f"v_mul_u32_u24 v5, {8*3584}, v4")
    A("v_lshl_add_u32 v5, v3, 4, v5")
    A("s_waitcnt lgkmcnt(0)")
    srd(A, 8, S_W1, 512 * 1792 * 2)
    srd(A, 12, S_WS, WS_SIZE)
    for i in range(8):
        A(f"s_add_u32 s4, s3, {i*3584}")
        A(f"buffer_load_dwordx4 v[{8+4*i}:{11+4*i}], v5, s[8:11], s4 offen")
    A("s_mov_b32 s6, 0x00003f80")
    A("s_mov_b32 s7, 0x3f800000")
    for e in range(8):
        A(f"v_mov_b32 v{48+e}, 0")
    for i in range(8):
        A(f"s_waitcnt vmcnt({7-i})")
        for q in range(4):
            A(f"v_dot2_f32_bf16 v{48+2*q}, v{8+4*i+q}, s6, v{48+2*q}")
            A(f"v_dot2_f32_bf16 v{49+2*q}, v{8+4*i+q}, s7, v{49+2*q}")
    A("v_lshlrev_b32 v6, 5, v0")
    A.nop(3)
    A("ds_write_b128 v6, v[48:51]")
    A("ds_write_b128 v6, v[52:55] offset:16")
    A("s_waitcnt lgkmcnt(0)")
    A("s_barrier")
    A("s_cmp_lg_u32 s5, 0")
    A("s_cbranch_scc1 K1_END")
    A("v_lshlrev_b32 v6, 2, v0")
    for b in range(4):
        for i in range(16):
            A(f"ds_read_b32 v{8+i}, v6 offset:{(b*16+i)*256}")
        if b == 0:
            A("v_mov_b32 v48, 0")
        A("s_waitcnt lgkmcnt(0)")
        for i in range(0, 16, 2):
            A(f"v_add_f32 v{8+i}, v{8+i}, v{9+i}")
        for i in range(0, 16, 4):
            A(f"v_add_f32 v{8+i}, v{8+i}, v{10+i}")
        A("v_add_f32 v8, v8, v12")
        A("v_add_f32 v16, v16, v20")
        A("v_add_f32 v8, v8, v16")
        A("v_add_f32 v48, v48, v8")
    A("s_lshl_b32 s3, s3, 1")
    A(f"s_add_u32 s3, s3, 0x{WS_CS:x}")
    A("buffer_store_dword v48, v6, s[12:15], s3 offen")
    A.label("K1_END")
    A("s_endpgm")
    return kernel_desc(name, 128)
```

```python
from common import *

CPY = 4288
KQ_CH = 4 * CPY
UROW = 160
UR_BASE = 2 * KQ_CH
UR_CH = 7680
K2_LDS = UR_BASE + 2 * UR_CH + 1024
YROW = 272
YP = 32 * YROW

def gen_k2(A, name, diag=False):
    kernel_begin(A, name)
    load_kernargs(A)
    A("s_cmp_ge_u32 s2, 256")
    A("s_cbranch_scc1 K2_END")
    A("v_and_b32 v1, 63, v0")
    A("v_lshrrev_b32 v2, 6, v0")
    A("s_and_b32 s3, s2, 7")
    A("s_lshl_b32 s3, s3, 5")
    A("s_lshr_b32 s4, s2, 3")
    A("s_add_u32 s3, s3, s4")
    A("v_readfirstlane_b32 s5, v2")
    A("v_lshlrev_b32 v3, 13, v0")
    A("v_lshlrev_b32 v4, 6, v0")
    A("v_lshlrev_b32 v5, 4, v1")
    A("s_lshr_b32 s6, s5, 1")
    A("s_and_b32 s7, s5, 1")
    A("s_lshl_b32 s42, s3, 5")
    if WS_XT: A(f"s_add_u32 s42, s42, 0x{WS_XT:x}")
    A("s_lshl_b32 s43, s3, 1")
    A("s_add_u32 s43, s43, s6")
    A("s_lshl_b32 s43, s43, 11")
    A(f"s_add_u32 s43, s43, 0x{WS_KC:x}")
    A(f"s_mov_b32 s44, 0x{WS_MS:x}")
    A("s_lshl_b32 s45, s3, 2")
    A("s_lshl_b32 s46, s3, 3")
    A(f"s_add_u32 s46, s46, 0x{WS_SC:x}")
    A("s_waitcnt lgkmcnt(0)")
    stamp(A, 1, 0, diag=diag)
    srd(A, 12, S_WS, WS_SIZE)
    A("buffer_load_dwordx4 v[32:35], v5, s[12:15], s43 offen")
    A("buffer_load_dwordx4 v[36:39], v5, s[12:15], s43 offen offset:1024")
    A("buffer_load_dwordx4 v[8:11], v3, s[12:15], s42 offen")
    A("buffer_load_dwordx4 v[12:15], v3, s[12:15], s42 offen offset:16")
    for i in range(4):
        A(f"buffer_load_dwordx4 v[{16+4*i}:{19+4*i}], v4, s[12:15], s44 offen offset:{16*i}")
    A(f"s_load_dword s47, s[{S_DSK}:{S_DSK+1}], s45")
    A(f"s_load_dwordx2 s[48:49], s[{S_WS}:{S_WS+1}], s46")
    for i in range(4):
        A(f"v_mov_b32 v{40+i}, 0")
    A("v_cmp_le_u32 vcc, 120, v0")
    A("v_subrev_u32 v6, 120, v0")
    A("s_nop 0")
    A("v_cndmask_b32 v6, v0, v6, vcc")
    A("v_lshrrev_b32 v7, 3, v6")
    A("v_and_b32 v6, 7, v6")
    A(f"v_mul_u32_u24 v7, {UROW}, v7")
    A("v_lshl_add_u32 v6, v6, 4, v7")
    A(f"v_add_u32 v7, {UR_CH}, v6")
    A("v_cndmask_b32 v6, v6, v7, vcc")
    A("v_cmp_gt_u32 vcc, 240, v0")
    A("s_and_saveexec_b64 s[50:51], vcc")
    A(f"ds_write_b128 v6, v[40:43] offset:{UR_BASE + 32*UROW}")
    A("s_mov_b64 exec, s[50:51]")
    A("v_and_b32 v6, 31, v1")
    A("v_lshrrev_b32 v7, 5, v1")
    A("v_lshlrev_b32 v6, 4, v6")
    A(f"s_mul_i32 s50, s6, {KQ_CH}")
    A(f"s_mul_i32 s51, s7, {CPY}")
    A("s_add_u32 s50, s50, s51")
    A("v_add_u32 v6, s50, v6")
    A("v_lshl_add_u32 v44, v7, 9, v6")
    A("v_lshl_add_u32 v45, v7, 10, v6")
    A("v_lshlrev_b32 v46, 4, v1")
    A("v_add_u32 v46, s50, v46")
    A("v_and_b32 v7, 1, v1")
    A("v_cmp_eq_u32 vcc, 0, v7")
    A("v_mov_b32 v47, 0x05040504")
    A("v_mov_b32 v48, 0x05040302")
    A("v_mov_b32 v49, 0x03020302")
    A("v_cndmask_b32 v47, v47, v48, vcc")
    A("v_cndmask_b32 v48, v48, v49, vcc")
    A("s_mov_b32 s52, 0x03020302")
    A("s_mov_b32 s53, 0x05040504")
    A("s_mov_b32 s54, 0x01000100")
    A("s_mov_b32 s55, 0x05040302")
    A("s_waitcnt vmcnt(6)")
    P = [32 + i for i in range(8)]
    N0, N1 = 50, 51
    A(f"v_perm_b32 v{N0}, v{P[3]}, v{P[3]}, s52")
    A(f"v_mov_b32 v{N1}, v{N0}")
    A(f"v_readlane_b32 s56, v{P[0]}, 0")
    A(f"v_readlane_b32 s57, v{P[1]}, 0")
    A(f"v_mov_b32_dpp v{N0}, v{P[0]} wave_shl:1 row_mask:0xf bank_mask:0xf")
    A(f"v_mov_b32_dpp v{N1}, v{P[1]} wave_shl:1 row_mask:0xf bank_mask:0xf")
    A("s_cmp_eq_u32 s7, 0")
    A("s_cbranch_scc0 K2_ODD")
    Q = [52 + 4 * i for i in range(10)]
    def al(d, hi, lo): A(f"v_alignbit_b32 v{d}, v{hi}, v{lo}, 16")
    def pm(d, s0, s1, sel): A(f"v_perm_b32 v{d}, v{s0}, v{s1}, {sel}")
    def mv(d, x): A(f"v_mov_b32 v{d}, v{x}")
    def wr(addr, q, off): A(f"ds_write_b128 v{addr}, v[{q}:{q+3}] offset:{off}")
    wr(44, P[0], 128)
    mv(Q[0], P[1]); mv(Q[0]+1, P[2]); mv(Q[0]+2, P[3]); mv(Q[0]+3, N0)
    wr(44, Q[0], 128 + 2*CPY)
    pm(Q[1], P[4], P[4], "s54"); mv(Q[1]+1, P[4]); pm(Q[1]+2, P[4], P[4], "s52"); pm(Q[1]+3, P[5], P[5], "s54")
    wr(44, Q[1], 128 + 1024)
    mv(Q[2], P[4]); mv(Q[2]+1, Q[1]+2); mv(Q[2]+2, Q[1]+3); mv(Q[2]+3, Q[1]+3)
    wr(44, Q[2], 128 + 1024 + 2*CPY)
    for k, (pe, pf, off) in enumerate(((P[5], P[6], 2048), (P[6], P[7], 2560))):
        q0, q2 = Q[3+2*k], Q[4+2*k]
        pm(q0, pf, pe, "s52"); mv(q0+1, q0); pm(q0+2, pf, pe, "v47"); pm(q0+3, pf, pe, "s53")
        wr(45, q0, 128 + off)
        mv(q2, q0); mv(q2+1, q0+2); mv(q2+2, q0+3); mv(q2+3, q0+3)
        wr(45, q2, 128 + off + 2*CPY)
    mv(Q[7], 40); mv(Q[7]+1, 40); mv(Q[7]+2, 40); mv(Q[7]+3, 40)
    A(f"v_writelane_b32 v{Q[7]+3}, s56, 7")
    A("s_mov_b64 exec, 0xff")
    wr(46, 40, 0)
    wr(46, Q[7], 2*CPY)
    A("s_mov_b64 exec, -1")
    A("s_branch K2_CPDONE")
    A.label("K2_ODD")
    al(Q[0], P[1], P[0]); al(Q[0]+1, P[2], P[1]); al(Q[0]+2, P[3], P[2]); al(Q[0]+3, N0, P[3])
    wr(44, Q[0], 128)
    mv(Q[8], Q[0]+1); mv(Q[8]+1, Q[0]+2); mv(Q[8]+2, Q[0]+3); al(Q[8]+3, N1, N0)
    wr(44, Q[8], 128 + 2*CPY)
    pm(Q[1], P[4], P[4], "s54"); pm(Q[1]+1, P[4], P[4], "s52"); pm(Q[1]+2, P[5], P[4], "s55"); pm(Q[1]+3, P[5], P[5], "s54")
    wr(44, Q[1], 128 + 1024)
    mv(Q[2], Q[1]+1); mv(Q[2]+1, Q[1]+2); mv(Q[2]+2, Q[1]+3); mv(Q[2]+3, Q[1]+3)
    wr(44, Q[2], 128 + 1024 + 2*CPY)
    for k, (pe, pf, off) in enumerate(((P[5], P[6], 2048), (P[6], P[7], 2560))):
        q0, q2 = Q[3+2*k], Q[4+2*k]
        pm(q0, pf, pe, "s52"); pm(q0+1, pf, pe, "v48"); pm(q0+2, pf, pe, "s53"); mv(q0+3, q0+2)
        wr(45, q0, 128 + off)
        mv(q2, q0+1); mv(q2+1, q0+2); mv(q2+2, q0+2); mv(q2+3, q0+2)
        wr(45, q2, 128 + off + 2*CPY)
    A("s_lshl_b32 s58, s56, 16")
    A("s_lshr_b32 s59, s56, 16")
    A("s_lshl_b32 s57, s57, 16")
    A("s_or_b32 s59, s59, s57")
    for i in range(4):
        mv(Q[7]+i, 40); mv(Q[9]+i, 40)
    A(f"v_writelane_b32 v{Q[7]+3}, s58, 7")
    A(f"v_writelane_b32 v{Q[9]+2}, s58, 7")
    A(f"v_writelane_b32 v{Q[9]+3}, s59, 7")
    A("s_mov_b64 exec, 0xff")
    wr(46, Q[7], 0)
    wr(46, Q[9], 2*CPY)
    A("s_mov_b64 exec, -1")
    A.label("K2_CPDONE")
    A("v_sub_u32 v6, 255, v0")
    A("v_lshrrev_b32 v7, 3, v6")
    A("v_and_b32 v6, 7, v6")
    A(f"v_mul_u32_u24 v7, {UROW}, v7")
    A("v_lshl_add_u32 v6, v6, 4, v7")
    A("s_waitcnt vmcnt(0) lgkmcnt(0)")
    A("s_lshl_b32 s60, s47, 16")
    A("s_and_b32 s61, s47, 0xffff0000")
    XF, WP, T = 96, 112, 52
    for c in range(2):
        for j in range(4):
            A(f"v_lshlrev_b32 v{XF+8*c+2*j}, 16, v{8+4*c+j}")
            A(f"v_and_b32 v{XF+8*c+2*j+1}, 0xffff0000, v{8+4*c+j}")
    for c in range(2):
        for r in range(8):
            A(f"v_sub_f32 v{T+8*c+r}, v{XF+8*c+r}, v{16+2*r}")
    for c in range(2):
        for j in range(4):
            A(f"v_cvt_pk_bf16_f32 v{68+4*c+j}, v{T+8*c+2*j}, v{T+8*c+2*j+1}")
    for c in range(2):
        for j in range(4):
            A(f"v_lshlrev_b32 v{T+8*c+2*j}, 16, v{68+4*c+j}")
            A(f"v_and_b32 v{T+8*c+2*j+1}, 0xffff0000, v{68+4*c+j}")
    for c in range(2):
        for r in range(8):
            A(f"v_mul_f32 v{T+8*c+r}, v{T+8*c+r}, v{17+2*r}")
    for c in range(2):
        for j in range(4):
            A(f"v_cvt_pk_bf16_f32 v{68+4*c+j}, v{T+8*c+2*j}, v{T+8*c+2*j+1}")
    for c in range(2):
        for j in range(4):
            A(f"v_lshlrev_b32 v{T+8*c+2*j}, 16, v{68+4*c+j}")
            A(f"v_and_b32 v{T+8*c+2*j+1}, 0xffff0000, v{68+4*c+j}")
    for c in range(2):
        for j in range(4):
            A(f"v_cvt_pk_f16_f32 v{76+4*c+j}, v{T+8*c+7-2*j}, v{T+8*c+6-2*j}")
        A(f"ds_write_b128 v6, v[{76+4*c}:{79+4*c}] offset:{UR_BASE + c*UR_CH}")
    for c in range(2):
        for r in range(8):
            A(f"v_mul_f32 v{T+8*c+r}, s{60+c}, v{T+8*c+r}")
        for j in range(4):
            A(f"v_cvt_pk_bf16_f32 v{WP+4*c+j}, v{T+8*c+2*j}, v{T+8*c+2*j+1}")
    A("v_and_b32 v2, 15, v1")
    A("v_lshrrev_b32 v3, 4, v1")
    A("v_add_u32 v4, 1, v2")
    A("v_and_b32 v5, 3, v4")
    A("v_sub_u32 v4, v4, v5")
    A("v_lshlrev_b32 v4, 1, v4")
    A(f"v_mul_u32_u24 v5, {CPY}, v5")
    A("v_add_u32 v4, v4, v5")
    A("v_lshl_add_u32 v4, v3, 4, v4")
    A(f"s_mul_i32 s50, s6, {KQ_CH}")
    A(f"s_mul_i32 s51, s7, {2*768}")
    A("s_add_u32 s50, s50, s51")
    A("v_add_u32 v4, s50, v4")
    A("v_sub_u32 v5, 15, v2")
    A(f"v_mul_u32_u24 v5, {UROW}, v5")
    A("v_lshl_add_u32 v5, v3, 4, v5")
    A(f"s_mul_i32 s50, s6, {UR_CH}")
    A(f"s_mul_i32 s51, s7, {12*UROW}")
    A("s_add_u32 s50, s50, s51")
    A(f"s_add_u32 s50, s50, {UR_BASE}")
    A("v_add_u32 v5, s50, v5")
    AR, BR, ACC = 120, 152, 184
    for i in range(32):
        A(f"v_mov_b32 v{ACC+i}, 0")
    A("s_cmp_eq_u32 s7, 0")
    A("s_cselect_b32 s50, 6, 2")
    A("s_waitcnt lgkmcnt(0)")
    A("s_barrier")
    stamp(A, 1, 1, diag=diag)
    def ldP(k, rel):
        out = []
        for h in range(2):
            r = AR + 8 * (k % 4) + 4 * h
            off = 64 * rel + 32 * h
            out.append(f"ds_read_b64 v[{r}:{r+1}], v4 offset:{off}")
            out.append(f"ds_read_b64 v[{r+2}:{r+3}], v4 offset:{off+8}")
        return out
    def ldB(k, rel, cs):
        out = []
        for c in cs:
            r = BR + 8 * (k % 4) + 4 * c
            off = UROW * (rel // 2) + 64 * (rel % 2) + (16 * UROW if c == 0 else 0)
            out.append(f"ds_read_b128 v[{r}:{r+3}], v5 offset:{off}")
        return out
    def mf(k, rho, c):
        ar = AR + 8 * ((k + rho // 2) % 4) + 4 * (rho % 2)
        br = BR + 8 * (k % 4) + 4 * c
        ac = ACC + 16 * c + 4 * rho
        return f"v_mfma_f32_16x16x32_f16 v[{ac}:{ac+3}], v[{ar}:{ar+3}], v[{br}:{br+3}], v[{ac}:{ac+3}]"
    for ln in ldP(0, 0) + ldP(1, 1) + ldB(0, 0, (1, 0)) + ldP(2, 2) + ldB(1, 1, (1, 0)):
        A(ln)
    A(".p2align 3")
    A.label("K2_DUAL")
    for s in range(4):
        lds = ldP(s + 3, s + 3) + ldB(s + 2, s + 2, (1, 0))
        A("s_waitcnt lgkmcnt(6)")
        ms = [mf(s, rho, c) for rho in range(4) for c in range(2)]
        for i, m in enumerate(ms):
            A(m)
            if i < len(lds): A(lds[i])
            if s == 3 and i == 6:
                A("v_add_u32 v4, 256, v4")
                A(f"v_add_u32 v5, {2*UROW}, v5")
                A("s_sub_u32 s50, s50, 1")
                A("s_cmp_lg_u32 s50, 0")
    A("s_cbranch_scc1 K2_DUAL")
    A("s_cmp_eq_u32 s7, 0")
    A("s_cbranch_scc1 K2_FIN")
    A("s_mov_b32 s50, 8")
    A("s_waitcnt lgkmcnt(0)")
    A(".p2align 3")
    A.label("K2_SINGLE")
    for s in range(4):
        lds = ldP(s + 3, s + 3) + ldB(s + 2, s + 2, (1,))
        A("s_waitcnt lgkmcnt(5)")
        ms = [mf(s, rho, 1) for rho in range(4)]
        for i, m in enumerate(ms):
            A(m)
            A(lds[i])
            if i == 3: A(lds[4])
        if s == 3:
            A("v_add_u32 v4, 256, v4")
            A(f"v_add_u32 v5, {2*UROW}, v5")
            A("s_sub_u32 s50, s50, 1")
            A("s_cmp_lg_u32 s50, 0")
    A("s_cbranch_scc1 K2_SINGLE")
    A.label("K2_FIN")
    A(f"v_mul_u32_u24 v4, {YROW}, v2")
    A("v_lshl_add_u32 v4, v3, 4, v4")
    A(f"s_mul_i32 s50, s5, {YP}")
    A("v_add_u32 v4, s50, v4")
    A("v_lshrrev_b32 v5, 3, v0")
    A("v_and_b32 v6, 7, v0")
    A(f"v_mul_u32_u24 v5, {YROW}, v5")
    A("v_lshl_add_u32 v5, v6, 5, v5")
    A("s_waitcnt lgkmcnt(0)")
    A("s_barrier")
    stamp(A, 1, 2, diag=diag)
    for c in range(2):
        for rho in range(4):
            ac = ACC + 16 * c + 4 * rho
            A(f"ds_write_b128 v4, v[{ac}:{ac+3}] offset:{c*16*YROW + 64*rho}")
    A("v_lshlrev_b32 v6, 4, v0")
    A("s_lshl_b32 s50, s3, 13")
    A(f"s_add_u32 s50, s50, 0x{WS_HT:x}")
    A("s_add_u32 s51, s50, 4096")
    A("s_waitcnt lgkmcnt(0)")
    A("s_barrier")
    for w in range(4):
        A(f"ds_read_b128 v[{8+8*w}:{11+8*w}], v5 offset:{w*YP}")
        A(f"ds_read_b128 v[{12+8*w}:{15+8*w}], v5 offset:{w*YP+16}")
    for c in range(2):
        for j in range(4):
            A(f"v_lshlrev_b32 v{T+8*c+2*j}, 16, v{WP+4*c+j}")
            A(f"v_and_b32 v{T+8*c+2*j+1}, 0xffff0000, v{WP+4*c+j}")
    for c in range(2):
        A(f"s_waitcnt lgkmcnt({4-4*c})")
        b = 8 + 16 * c
        for r in range(8):
            A(f"v_add_f32 v{b+r}, v{b+r}, v{b+8+r}")
        for r in range(8):
            A(f"v_mul_f32 v{b+r}, s{48+c}, v{b+r}")
        for j in range(4):
            A(f"v_cvt_pk_bf16_f32 v{b+8+j}, v{b+2*j}, v{b+2*j+1}")
        for j in range(4):
            A(f"v_lshlrev_b32 v{b+2*j}, 16, v{b+8+j}")
            A(f"v_and_b32 v{b+2*j+1}, 0xffff0000, v{b+8+j}")
        for r in range(8):
            A(f"v_add_f32 v{b+r}, v{b+r}, v{T+8*c+r}")
        for j in range(4):
            A(f"v_cvt_pk_bf16_f32 v{b+8+j}, v{b+2*j}, v{b+2*j+1}")
        for j in range(4):
            A(f"v_lshlrev_b32 v{b+2*j}, 16, v{b+8+j}")
            A(f"v_and_b32 v{b+2*j+1}, 0xffff0000, v{b+8+j}")
        for r in range(8):
            A(f"v_add_f32 v{b+r}, v{b+r}, v{XF+8*c+r}")
        for j in range(4):
            A(f"v_cvt_pk_bf16_f32 v{b+8+j}, v{b+2*j}, v{b+2*j+1}")
        A(f"buffer_store_dwordx4 v[{b+8}:{b+11}], v6, s[12:15], s{50+c} offen")
    if diag:
        A("s_waitcnt vmcnt(0)")
    stamp(A, 1, 3, diag=diag)
    A.label("K2_END")
    A("s_endpgm")
    return kernel_desc(name, 224)
```

```python
from common import *

SLOT = 32768
NSLOT = 4
K3_LDS = SLOT * NSLOT

def ln_finish(A, mean, var, t0, t1):
    pass

def gen_k3(A, name, diag=False):
    kernel_begin(A, name)
    load_kernargs(A)
    A("s_cmp_ge_u32 s2, 256")
    A("s_cbranch_scc1 K3_END")
    A("v_and_b32 v1, 63, v0")
    A("v_lshrrev_b32 v2, 6, v0")
    A("s_and_b32 s3, s2, 7")
    A("s_lshr_b32 s4, s2, 3")
    A("s_lshl_b32 s3, s3, 1")
    A("s_lshr_b32 s6, s4, 4")
    A("s_add_u32 s3, s3, s6")
    A("s_and_b32 s4, s4, 15")
    A("v_readfirstlane_b32 s5, v2")
    A("v_lshrrev_b32 v3, 4, v1")
    A("v_lshl_add_u32 v4, v2, 2, v3")
    A("v_and_b32 v5, 7, v4")
    A("v_bfe_u32 v6, v1, 1, 3")
    A("v_xor_b32 v6, v6, v5")
    A("v_and_b32 v7, 1, v1")
    A("v_lshlrev_b32 v7, 4, v7")
    A("v_lshl_add_u32 v7, v6, 5, v7")
    A("v_lshl_add_u32 v8, v4, 12, v7")
    A(f"v_mul_u32_u24 v9, 3584, v4")
    A("v_add_u32 v9, v9, v7")
    A("v_cmp_eq_u32 vcc, 7, v6")
    A("v_mov_b32 v10, 0x40000000")
    A("s_lshl_b32 s42, s3, 8")
    A(f"s_add_u32 s42, s42, 0x{WS_HT:x}")
    A("v_cndmask_b32 v9, v9, v10, vcc")
    A("s_mul_i32 s43, s4, 224")
    A("s_lshl_b32 s44, s5, 10")
    A("v_lshlrev_b32 v10, 4, v3")
    A("s_mul_i32 s45, s4, 448")
    A(f"s_add_u32 s45, s45, 0x{WS_CS:x}")
    A("s_waitcnt lgkmcnt(0)")
    stamp(A, 2, 0, diag=diag)
    srd(A, 8, S_W1, 512 * 1792 * 2)
    srd(A, 12, S_WS, WS_SIZE)
    def dma(c):
        out = []
        sl = c % NSLOT
        for i in range(4):
            out.append([f"s_add_u32 m0, s44, {sl*SLOT + i*4096}",
                        f"s_add_u32 s46, s42, {(c*64+16*i)*4096}",
                        "buffer_load_dwordx4 v8, s[12:15], s46 offen lds"])
            out.append([f"s_add_u32 m0, s44, {sl*SLOT + 16384 + i*4096}",
                        f"s_add_u32 s46, s43, {(c*64+16*i)*3584}",
                        "buffer_load_dwordx4 v9, s[8:11], s46 offen lds"])
        return out
    CS = 200
    for g in dma(0):
        for ln in g: A(ln)
    for ft in range(7):
        A(f"buffer_load_dwordx4 v[{CS+4*ft}:{CS+4*ft+3}], v10, s[12:15], s45 offen offset:{64*ft}")
    for c in range(1, NSLOT):
        for g in dma(c):
            for ln in g: A(ln)
    A("v_bfe_u32 v4, v1, 2, 2")
    A("v_lshl_add_u32 v4, v3, 2, v4")
    A("v_and_b32 v5, 7, v4")
    A("v_and_b32 v6, 3, v1")
    A("v_lshlrev_b32 v6, 3, v6")
    A("v_lshl_add_u32 v6, v4, 8, v6")
    AD = 12
    A("s_lshl_b32 s46, s5, 1")
    A("v_xor_b32 v7, s46, v5")
    A(f"v_lshl_add_u32 v{AD}, v7, 5, v6")
    A(f"v_xor_b32 v{AD+1}, 32, v{AD}")
    for ft in range(7):
        A(f"v_xor_b32 v7, {ft}, v5")
        A(f"v_lshl_add_u32 v{AD+2+ft}, v7, 5, v6")
        A(f"v_add_u32 v{AD+2+ft}, 0x4000, v{AD+2+ft}")
    for i in range(9):
        A(f"v_add_u32 v{AD+9+i}, 0x10000, v{AD+i}")
    FR = 32
    ACC = 104
    SS = ACC + 56
    QQ = SS + 8
    ONES = 176
    for i in range(4):
        A(f"v_mov_b32 v{ONES+i}, 0x3f803f80")
    def reads(step):
        c, ks = step // 2, step % 2
        sl = c % NSLOT
        buf = FR + 36 * (step % 2)
        out = []
        for i in range(9):
            ad = AD + i + (9 if sl >= 2 else 0)
            for hf in range(2):
                off = (sl % 2) * SLOT + (32 * ks + 16 * hf) * 256
                r = buf + 4 * i + 2 * hf
                out.append(f"ds_read_b64_tr_b16 v[{r}:{r+1}], v{ad} offset:{off}")
        return out
    def mfmas(step):
        buf = FR + 36 * (step % 2)
        first = step == 0
        out = []
        def m(d, a_, b_):
            cin = "0" if first else f"v[{d}:{d+3}]"
            return f"v_mfma_f32_16x16x32_bf16 v[{d}:{d+3}], v[{a_}:{a_+3}], v[{b_}:{b_+3}], {cin}"
        for lt in range(2):
            out.append((m(SS + 4 * lt, ONES, buf + 4 * lt), 4))
            out.append((m(QQ + 4 * lt, buf + 4 * lt, buf + 4 * lt), 4))
        for ft in range(7):
            for lt in range(2):
                out.append((m(ACC + 8 * ft + 4 * lt, buf + 8 + 4 * ft, buf + 4 * lt), 6 + 2 * ft))
        return out
    A("s_waitcnt vmcnt(31)")
    A("s_barrier")
    stamp(A, 2, 1, diag=diag)
    for i, ln in enumerate(reads(0)):
        A(ln)
        if i == 11: A("s_waitcnt lgkmcnt(6)")
    NST = 16
    for step in range(NST):
        c, ks = step // 2, step % 2
        rd = reads(step + 1) if step + 1 < NST else []
        extra = []
        if ks == 1 and c + 1 < 8:
            inflight = min(7, c + 3) - (c + 1)
            A(f"s_waitcnt vmcnt({8*inflight}) lgkmcnt(0)")
            A("s_barrier")
            if c + 4 < 8:
                extra = dma(c + 4)
            known = 18
        else:
            known = 0
        ms = mfmas(step)
        issued = 0
        for i, (m, need) in enumerate(ms):
            if need > known:
                n = min(15, 18 - need + issued)
                A(f"s_waitcnt lgkmcnt({n})")
                known = max(need, 18 - (n - issued)) if n - issued >= 0 else 18
            A(m)
            if i < len(rd):
                A(rd[i]); issued += 1
            if extra and i % 2 == 1 and i // 2 < len(extra):
                for ln in extra[i // 2]: A(ln)
    stamp(A, 2, 2, diag=diag)
    A("v_and_b32 v4, 3, v1")
    A("v_and_b32 v5, 15, v1")
    A("v_lshrrev_b32 v6, 2, v5")
    A("v_lshl_add_u32 v6, v6, 4, v5")
    A("v_lshlrev_b32 v6, 2, v6")
    A("v_cmp_eq_u32 s[46:47], 1, v4")
    A("v_cmp_eq_u32 s[48:49], 2, v4")
    A("v_cmp_eq_u32 s[50:51], 3, v4")
    A.nop(2)
    for lt in range(2):
        q = QQ + 4 * lt
        A(f"v_cndmask_b32 v{q}, v{q}, v{q+1}, s[46:47]")
        A(f"v_cndmask_b32 v{q}, v{q}, v{q+2}, s[48:49]")
        A(f"v_cndmask_b32 v{q}, v{q}, v{q+3}, s[50:51]")
    for lt in range(2):
        A(f"ds_bpermute_b32 v{32+lt}, v6, v{QQ+4*lt}")
    for lt in range(2):
        A(f"v_mul_f32 v{34+lt}, {fhex(1/512)}, v{SS+4*lt}")
    A("v_cvt_pk_bf16_f32 v36, v34, v35")
    A("v_lshlrev_b32 v40, 16, v36")
    A("v_and_b32 v42, 0xffff0000, v36")
    for lt in range(2):
        A(f"v_mul_f32 v{34+lt}, v{34+lt}, v{34+lt}")
    A(f"s_mov_b32 s46, {fhex(1/512)}")
    A("s_waitcnt lgkmcnt(0)")
    for lt in range(2):
        A(f"v_fma_f32 v{32+lt}, v{32+lt}, s46, -v{34+lt}")
    for lt in range(2):
        A(f"v_max_f32 v{32+lt}, 0, v{32+lt}")
    A("v_cvt_pk_bf16_f32 v36, v32, v33")
    A("v_lshlrev_b32 v32, 16, v36")
    A("v_and_b32 v33, 0xffff0000, v36")
    A(f"v_add_f32 v32, {fhex(1e-5)}, v32")
    A(f"v_add_f32 v33, {fhex(1e-5)}, v33")
    A("v_cvt_pk_bf16_f32 v36, v32, v33")
    A("v_lshlrev_b32 v32, 16, v36")
    A("v_and_b32 v33, 0xffff0000, v36")
    A("v_sqrt_f32 v32, v32")
    A("v_sqrt_f32 v33, v33")
    A("s_nop 0")
    A("v_cvt_pk_bf16_f32 v36, v32, v33")
    A("v_lshlrev_b32 v32, 16, v36")
    A("v_and_b32 v33, 0xffff0000, v36")
    A("v_rcp_f32 v41, v32")
    A("v_rcp_f32 v43, v33")
    A("v_lshlrev_b32 v6, 4, v1")
    A("s_lshl_b32 s46, s3, 3")
    A("s_lshl_b32 s47, s5, 1")
    A("s_add_u32 s46, s46, s47")
    A(f"s_mul_i32 s46, s46, {56*1024}")
    A("s_mul_i32 s47, s4, 7")
    A("s_lshr_b32 s47, s47, 1")
    A("s_lshl_b32 s47, s47, 10")
    A("s_add_u32 s46, s46, s47")
    A(f"s_add_u32 s46, s46, 0x{WS_HH:x}")
    A(f"s_add_u32 s47, s46, {56*1024}")
    OUT = 48
    for lt in range(2):
        mr = 40 + 2 * lt
        for ft in range(7):
            ac = ACC + 8 * ft + 4 * lt
            for h in range(2):
                A(f"v_pk_fma_f32 v[{ac+2*h}:{ac+2*h+1}], v[{CS+4*ft+2*h}:{CS+4*ft+2*h+1}], v[{mr}:{mr+1}], v[{ac+2*h}:{ac+2*h+1}] op_sel:[0,0,0] op_sel_hi:[1,0,1] neg_lo:[0,1,0] neg_hi:[0,1,0]")
            for h in range(2):
                A(f"v_pk_mul_f32 v[{ac+2*h}:{ac+2*h+1}], v[{ac+2*h}:{ac+2*h+1}], v[{mr}:{mr+1}] op_sel:[0,1] op_sel_hi:[1,1]")
            for h in range(2):
                A(f"v_cvt_pk_bf16_f32 v{OUT+14*lt+2*ft+h}, v{ac+2*h}, v{ac+2*h+1}")
            for h in range(2):
                A(f"v_pk_max_i16 v{OUT+14*lt+2*ft+h}, v{OUT+14*lt+2*ft+h}, 0")
    A("s_bitcmp1_b32 s4, 0")
    A("s_cbranch_scc1 K3_ODD")
    for par in range(2):
        if par: A.label("K3_ODD")
        for lt in range(2):
            o = OUT + 14 * lt
            if par == 0:
                for p in range(3):
                    A(f"buffer_store_dwordx4 v[{o+4*p}:{o+4*p+3}], v6, s[12:15], s{46+lt} offen offset:{1024*p}")
                A(f"buffer_store_dwordx2 v[{o+12}:{o+13}], v6, s[12:15], s{46+lt} offen offset:3072")
            else:
                A(f"buffer_store_dwordx2 v[{o}:{o+1}], v6, s[12:15], s{46+lt} offen offset:8")
                for p in range(3):
                    A(f"buffer_store_dwordx4 v[{o+2+4*p}:{o+2+4*p+3}], v6, s[12:15], s{46+lt} offen offset:{1024*(p+1)}")
        if diag:
            A("s_waitcnt vmcnt(0)")
        stamp(A, 2, 3, diag=diag)
        if par == 0: A("s_endpgm")
    A.label("K3_END")
    A("s_endpgm")
    return kernel_desc(name, 256 if diag else 232)
```

```python
from common import *

DEPTH = 7
WREG = DEPTH * 4096
RES = 4 * WREG
K4_LDS = RES + 8192
PROW = 1024

def gen_k4(A, name, diag=False):
    kernel_begin(A, name)
    load_kernargs(A)
    A("s_cmp_ge_u32 s2, 256")
    A("s_cbranch_scc1 K4_END")
    A("v_and_b32 v1, 63, v0")
    A("v_lshrrev_b32 v2, 6, v0")
    A("s_and_b32 s3, s2, 7")
    A("s_lshr_b32 s4, s2, 3")
    A("s_lshl_b32 s3, s3, 2")
    A("s_lshr_b32 s6, s4, 3")
    A("s_add_u32 s3, s3, s6")
    A("s_and_b32 s4, s4, 7")
    A("v_readfirstlane_b32 s5, v2")
    A("v_lshrrev_b32 v3, 3, v1")
    A("v_bfe_u32 v4, v1, 1, 2")
    A("v_bfe_u32 v5, v1, 4, 2")
    A("v_xor_b32 v4, v4, v5")
    A("v_and_b32 v5, 1, v1")
    A("v_lshlrev_b32 v5, 4, v5")
    A("v_lshl_add_u32 v5, v4, 5, v5")
    A("v_lshl_add_u32 v8, v3, 10, v5")
    A("v_lshl_add_u32 v9, v3, 12, v5")
    A("v_lshlrev_b32 v10, 4, v1")
    A(f"s_mul_i32 s42, s5, {14*32*1024}")
    A("s_lshl_b32 s43, s4, 7")
    A("s_add_u32 s42, s42, s43")
    A(f"s_mul_i32 s43, s3, {4*56*1024}")
    A(f"s_mul_i32 s44, s5, {14*1024}")
    A("s_add_u32 s43, s43, s44")
    A(f"s_add_u32 s43, s43, 0x{WS_HH:x}")
    for j in range(1, 4):
        A(f"s_add_u32 s{51+j}, s43, {j*56*1024}")
    A("s_mov_b32 s51, s43")
    A(f"s_mul_i32 s44, s5, {WREG}")
    A("s_lshl_b32 s45, s4, 6")
    A("s_lshl_b32 s46, s5, 4")
    A("s_add_u32 s45, s45, s46")
    A("s_lshl_b32 s45, s45, 12")
    A("s_lshl_b32 s46, s3, 7")
    A("s_add_u32 s45, s45, s46")
    A(f"s_add_u32 s45, s45, 0x{WS_HT:x}")
    A("s_lshl_b32 s46, s5, 11")
    A("s_waitcnt lgkmcnt(0)")
    stamp(A, 3, 0, diag=diag)
    srd(A, 8, S_W2, 512 * 1792 * 2)
    srd(A, 12, S_WS, WS_SIZE)
    srd(A, 56, S_OUT, 2048 * 512 * 2)
    HB = 16
    AF = HB + 16 * DEPTH
    ACC = AF + 32
    assert ACC + 64 <= 240
    def loads(i):
        sl = i % DEPTH
        out = []
        for q in range(4):
            out.append([f"s_add_u32 m0, s44, {sl*4096 + q*1024}",
                        f"s_add_u32 s47, s42, {(i*32+q*8)*1024}",
                        "buffer_load_dwordx4 v8, s[8:11], s47 offen lds"])
            blk, off = divmod(i, 4)
            if off == 0 and q == 0 and blk > 0:
                pass
            out.append([f"s_add_u32 s48, s{51+q}, {blk*4096}",
                        f"buffer_load_dwordx4 v[{HB+16*sl+4*q}:{HB+16*sl+4*q+3}], v10, s[12:15], s48 offen offset:{off*1024}"])
        return out
    for i in range(2):
        A(f"s_add_u32 m0, s46, {RES + i*1024}")
        A(f"s_add_u32 s47, s45, {i*8*4096}")
        A("buffer_load_dwordx4 v9, s[12:15], s47 offen lds")
    for i in range(DEPTH):
        for g in loads(i):
            for ln in g: A(ln)
    A("v_lshrrev_b32 v3, 2, v1")
    A("v_bfe_u32 v4, v1, 3, 2")
    A("v_and_b32 v5, 3, v1")
    A("v_lshlrev_b32 v5, 3, v5")
    A("v_lshl_add_u32 v5, v3, 7, v5")
    for dt in range(4):
        A(f"v_xor_b32 v6, {dt}, v4")
        A(f"v_lshl_add_u32 v{11+dt}, v6, 5, v5")
    A("v_xor_b32 v6, s5, v4")
    A("v_lshl_add_u32 v7, v6, 5, v5")
    A(f"v_add_u32 v7, {RES}, v7")
    for dt in range(4):
        A(f"v_add_u32 v{11+dt}, s44, v{11+dt}")
    def reads(i):
        sl = i % DEPTH
        buf = AF + 16 * (i % 2)
        out = []
        for dt in range(4):
            for hf in range(2):
                r = buf + 4 * dt + 2 * hf
                out.append(f"ds_read_b64_tr_b16 v[{r}:{r+1}], v{11+dt} offset:{sl*4096 + hf*2048}")
        return out
    NK = 14
    A(f"s_waitcnt vmcnt({8*(DEPTH-1)})")
    stamp(A, 3, 1, diag=diag)
    for ln in reads(0): A(ln)
    for i in range(NK):
        rd = []
        if i + 1 < NK:
            last = min(NK - 1, i + DEPTH - 1)
            A(f"s_waitcnt vmcnt({8*(last-(i+1))}) lgkmcnt(0)")
            rd = reads(i + 1)
        else:
            A("s_waitcnt lgkmcnt(0)")
        buf = AF + 16 * (i % 2)
        hb = HB + 16 * (i % DEPTH)
        k = 0
        for q in range(4):
            for dt in range(4):
                ac = ACC + 16 * q + 4 * dt
                cin = "0" if i == 0 else f"v[{ac}:{ac+3}]"
                A(f"v_mfma_f32_16x16x32_bf16 v[{ac}:{ac+3}], v[{buf+4*dt}:{buf+4*dt+3}], v[{hb+4*q}:{hb+4*q+3}], {cin}")
                if k < len(rd): A(rd[k])
                k += 1
            if i + DEPTH < NK:
                g = loads(i + DEPTH)
                for ln in g[2*q] + g[2*q+1]: A(ln)
    stamp(A, 3, 2, diag=diag)
    A("s_barrier")
    A("v_lshlrev_b32 v3, 4, v1")
    A("s_lshl_b32 s47, s5, 12")
    A("v_add_u32 v4, s47, v3")
    A("s_lshl_b32 s47, s5, 14")
    A("v_add_u32 v5, s47, v3")
    A.nop(4)
    for q in range(4):
        for dt in range(4):
            ac = ACC + 16 * q + 4 * dt
            A(f"ds_write_b128 v4, v[{ac}:{ac+3}] offset:{q*16384 + dt*1024}")
    A("v_and_b32 v3, 15, v1")
    A("v_lshrrev_b32 v6, 4, v1")
    A("v_lshlrev_b32 v6, 3, v6")
    A("v_lshl_add_u32 v6, v3, 10, v6")
    A("s_lshl_b32 s47, s3, 16")
    A("s_lshl_b32 s48, s5, 14")
    A("s_add_u32 s47, s47, s48")
    A("s_lshl_b32 s48, s4, 7")
    A("s_add_u32 s47, s47, s48")
    A("s_waitcnt vmcnt(0) lgkmcnt(0)")
    A("s_barrier")
    for dt in range(4):
        A(f"ds_read_b64_tr_b16 v[{80+2*dt}:{81+2*dt}], v7 offset:{dt*2048}")
    for dt in range(4):
        for w in range(4):
            if dt == 3 and w == 0:
                pass
            A(f"ds_read_b128 v[{16+16*dt+4*w}:{19+16*dt+4*w}], v5 offset:{w*4096 + dt*1024}")
        if dt == 1:
            A("s_waitcnt lgkmcnt(4)")
    for dt in range(4):
        A(f"s_waitcnt lgkmcnt({4*(3-dt)})")
        b = 16 + 16 * dt
        for j in range(4):
            A(f"v_add_f32 v{b+j}, v{b+j}, v{b+4+j}")
            A(f"v_add_f32 v{b+8+j}, v{b+8+j}, v{b+12+j}")
        for j in range(4):
            A(f"v_add_f32 v{b+j}, v{b+j}, v{b+8+j}")
        A(f"v_cvt_pk_bf16_f32 v{b+4}, v{b}, v{b+1}")
        A(f"v_cvt_pk_bf16_f32 v{b+5}, v{b+2}, v{b+3}")
        for h in range(2):
            A(f"v_lshlrev_b32 v{b+2*h}, 16, v{b+4+h}")
            A(f"v_and_b32 v{b+2*h+1}, 0xffff0000, v{b+4+h}")
            A(f"v_lshlrev_b32 v{b+8+2*h}, 16, v{80+2*dt+h}")
            A(f"v_and_b32 v{b+8+2*h+1}, 0xffff0000, v{80+2*dt+h}")
        for j in range(4):
            A(f"v_add_f32 v{b+j}, v{b+j}, v{b+8+j}")
        A(f"v_cvt_pk_bf16_f32 v{b+4}, v{b}, v{b+1}")
        A(f"v_cvt_pk_bf16_f32 v{b+5}, v{b+2}, v{b+3}")
        A(f"buffer_store_dwordx2 v[{b+4}:{b+5}], v6, s[56:59], s47 offen offset:{32*dt}")
    if diag:
        A("s_waitcnt vmcnt(0)")
    stamp(A, 3, 3, diag=diag)
    A.label("K4_END")
    A("s_endpgm")
    return kernel_desc(name, 256 if diag else 232)
```

```python
import sys, importlib
from common import *
import k1, k2
HDR = open("sequential_preLN__ssm_conv_s4d__dense_activation_relu__prompt.s.ref").read().split("; Override launch")[0]

def build(out, diag=False, upto=4, extra=()):
    A = Asm()
    descs = []
    launches = []
    descs.append(k1.gen_k1(A, "k1_kernel", diag=120 if diag else False))
    launches.append(f"; @launch kernel=k1_kernel grid=(284,1,1) block=(512,1,1) lds={k1.K1_LDS}")
    if upto >= 2:
        descs.append(k2.gen_k2(A, "k2_kernel", diag=220 if diag else False))
        launches.append(f"; @launch kernel=k2_kernel grid=(256,1,1) block=(256,1,1) lds={k2.K2_LDS}")
    if upto >= 3:
        import k3
        descs.append(k3.gen_k3(A, "k3_kernel", diag=250 if diag else False))
        launches.append(f"; @launch kernel=k3_kernel grid=(256,1,1) block=(256,1,1) lds={k3.K3_LDS}")
    if upto >= 4:
        import k4
        descs.append(k4.gen_k4(A, "k4_kernel", diag=250 if diag else False))
        launches.append(f"; @launch kernel=k4_kernel grid=(256,1,1) block=(256,1,1) lds={k4.K4_LDS}")
    txt = HDR + "\n".join(launches) + "\n" + '.amdgcn_target "amdgcn-amd-amdhsa--gfx950"\n.text\n' + A.text() + '.section .rodata,"a"\n' + "".join(descs)
    open(out, "w").write(txt)

if __name__ == "__main__":
    out = sys.argv[1]
    diag = "diag" in sys.argv
    if "dbg" in sys.argv: DBGSTAMP[0] = True
    upto = 4
    for x in sys.argv:
        if x.startswith("upto="): upto = int(x[5:])
    build(out, diag, upto)
```

```python
import importlib, common, sys
import build
base = open("test.s").read()
lines = base.split("\n")
idx = max(i for i, l in enumerate(lines) if l.startswith("; @launch"))
for n in (1, 4):
    l2 = lines[:idx+1] + ["; @launch kernel=e_kernel grid=(256,1,1) block=(256,1,1) lds=0"] * n + lines[idx+1:]
    t = "\n".join(l2)
    t = t.replace('.section .rodata,"a"\n', '.globl e_kernel\n.p2align 8\n.type e_kernel,@function\ne_kernel:\n    s_endpgm\n.section .rodata,"a"\n' + common.kernel_desc("e_kernel", 8, 16))
    open(f"v_empty{n}.s", "w").write(t)
```

```python
from asmlib import *
import math
WS_XT = 0x000000
WS_HT = 0x200000
WS_KC = 0x400000
WS_SC = 0x500000
WS_MS = 0x501000
WS_CS = 0x506000
WS_HH = 0x600000
WS_TS = 0xF00000
WS_SIZE = 268435456

S_X, S_LAR, S_AIM, S_CR, S_CI, S_LDT, S_DSK, S_BX = 16, 18, 20, 22, 24, 26, 28, 30
S_W1, S_W2, S_OUT, S_DBG, S_WS = 32, 34, 36, 38, 40

def load_kernargs(A):
    A("s_load_dwordx16 s[16:31], s[0:1], 0")
    A("s_load_dwordx8 s[32:39], s[0:1], 64")
    A("s_load_dwordx2 s[40:41], s[0:1], 96")

L2E = 1.4426950408889634
import numpy as np
L2E_HI = float(np.float32(L2E))
L2E_LO = L2E - L2E_HI
LN2 = 0.6931471805599453

def wave_reduce(A, regs, op="v_add_f32"):
    steps = ["row_shr:1 row_mask:0xf bank_mask:0xf bound_ctrl:0",
             "row_shr:2 row_mask:0xf bank_mask:0xf bound_ctrl:0",
             "row_shr:4 row_mask:0xf bank_mask:0xf bound_ctrl:0",
             "row_shr:8 row_mask:0xf bank_mask:0xf bound_ctrl:0",
             "row_bcast:15 row_mask:0xa bank_mask:0xf",
             "row_bcast:31 row_mask:0xc bank_mask:0xf"]
    pad = max(0, 2 - (len(regs) - 1))
    A.nop(2)
    for st in steps:
        for r in regs:
            A(f"{op}_dpp v{r}, v{r}, v{r} {st}")
        A.nop(pad)

DBGSTAMP = [False]
NLAUNCH = [4]
def stamp(A, slot, idx, sreg=90, diag=False):
    if not diag:
        return
    if DBGSTAMP[0]:
        lab = A.newlabel("ST")
        A("s_cmp_lg_u32 s2, 0")
        A(f"s_cbranch_scc1 {lab}")
        A(f"s_memrealtime s[{sreg}:{sreg+1}]")
        A(f"s_add_u32 s{sreg+4}, s{S_DBG}, {512*(NLAUNCH[0]-1-slot)}")
        A(f"s_addc_u32 s{sreg+5}, s{S_DBG+1}, 0")
        A("s_waitcnt lgkmcnt(0)")
        A(f"v_mov_b32 v{diag}, s{sreg}")
        A(f"v_mov_b32 v{diag+2}, {16*slot+4*idx}")
        A(f"s_mov_b64 s[{sreg+6}:{sreg+7}], exec")
        A("s_mov_b64 exec, 1")
        A(f"global_store_dword v{diag+2}, v{diag}, s[{sreg+4}:{sreg+5}]")
        A(f"s_mov_b64 exec, s[{sreg+6}:{sreg+7}]")
        A.label(lab)
        return
    A(f"s_memrealtime s[{sreg}:{sreg+1}]")
    A(f"s_lshl_b32 s{sreg+2}, s2, 6")
    A(f"s_add_u32 s{sreg+2}, s{sreg+2}, 0x{WS_TS + slot*65536 + idx*8:x}")
    A(f"s_add_u32 s{sreg+4}, s{S_WS}, s{sreg+2}")
    A(f"s_addc_u32 s{sreg+5}, s{S_WS+1}, 0")
    A("s_waitcnt lgkmcnt(0)")
    A(f"v_mov_b32 v{diag}, s{sreg}")
    A(f"v_mov_b32 v{diag+1}, s{sreg+1}")
    A(f"v_mov_b32 v{diag+2}, 0")
    A(f"s_mov_b64 s[{sreg+6}:{sreg+7}], exec")
    A("s_mov_b64 exec, 1")
    A(f"global_store_dwordx2 v{diag+2}, v[{diag}:{diag+1}], s[{sreg+4}:{sreg+5}]")
    A(f"s_mov_b64 exec, s[{sreg+6}:{sreg+7}]")
```

```python
from asmlib import *
import math
WS_B = 0x7000000
WS_XT = WS_B + 0x000000
WS_HT = WS_B + 0x200000
WS_KC = WS_B + 0x400000
WS_SC = WS_B + 0x500000
WS_MS = WS_B + 0x501000
WS_CS = WS_B + 0x506000
WS_HH = WS_B + 0x600000
WS_TS = 0xF00000
WS_SIZE = 268435456

S_X, S_LAR, S_AIM, S_CR, S_CI, S_LDT, S_DSK, S_BX = 16, 18, 20, 22, 24, 26, 28, 30
S_W1, S_W2, S_OUT, S_DBG, S_WS = 32, 34, 36, 38, 40

def load_kernargs(A):
    A("s_load_dwordx16 s[16:31], s[0:1], 0")
    A("s_load_dwordx8 s[32:39], s[0:1], 64")
    A("s_load_dwordx2 s[40:41], s[0:1], 96")

L2E = 1.4426950408889634
import numpy as np
L2E_HI = float(np.float32(L2E))
L2E_LO = L2E - L2E_HI
LN2 = 0.6931471805599453

def wave_reduce(A, regs, op="v_add_f32"):
    steps = ["row_shr:1 row_mask:0xf bank_mask:0xf bound_ctrl:0",
             "row_shr:2 row_mask:0xf bank_mask:0xf bound_ctrl:0",
             "row_shr:4 row_mask:0xf bank_mask:0xf bound_ctrl:0",
             "row_shr:8 row_mask:0xf bank_mask:0xf bound_ctrl:0",
             "row_bcast:15 row_mask:0xa bank_mask:0xf",
             "row_bcast:31 row_mask:0xc bank_mask:0xf"]
    pad = max(0, 2 - (len(regs) - 1))
    A.nop(2)
    for st in steps:
        for r in regs:
            A(f"{op}_dpp v{r}, v{r}, v{r} {st}")
        A.nop(pad)

def stamp(A, slot, idx, sreg=90, diag=False):
    if not diag:
        return
    A(f"s_memrealtime s[{sreg}:{sreg+1}]")
    A(f"s_lshl_b32 s{sreg+2}, s2, 6")
    A(f"s_add_u32 s{sreg+2}, s{sreg+2}, 0x{WS_TS + slot*65536 + idx*8:x}")
    A(f"s_add_u32 s{sreg+4}, s{S_WS}, s{sreg+2}")
    A(f"s_addc_u32 s{sreg+5}, s{S_WS+1}, 0")
    A("s_waitcnt lgkmcnt(0)")
    A(f"v_mov_b32 v{diag}, s{sreg}")
    A(f"v_mov_b32 v{diag+1}, s{sreg+1}")
    A(f"v_mov_b32 v{diag+2}, 0")
    A(f"s_mov_b64 s[{sreg+6}:{sreg+7}], exec")
    A("s_mov_b64 exec, 1")
    A(f"global_store_dwordx2 v{diag+2}, v[{diag}:{diag+1}], s[{sreg+4}:{sreg+5}]")
    A(f"s_mov_b64 exec, s[{sreg+6}:{sreg+7}]")
```

```python
from asmlib import *
import math
WS_XT = 0x000000
WS_HT = 0x200000
WS_KC = 0x400000
WS_SC = 0x500000
WS_MS = 0x501000
WS_CS = 0x506000
WS_HH = 0x600000
WS_TS = 0xF00000
WS_SIZE = 268435456

S_X, S_LAR, S_AIM, S_CR, S_CI, S_LDT, S_DSK, S_BX = 16, 18, 20, 22, 24, 26, 28, 30
S_W1, S_W2, S_OUT, S_DBG, S_WS = 32, 34, 36, 38, 40

def load_kernargs(A):
    A("s_load_dwordx16 s[16:31], s[0:1], 0")
    A("s_load_dwordx8 s[32:39], s[0:1], 64")
    A("s_load_dwordx2 s[40:41], s[0:1], 96")

L2E = 1.4426950408889634
import numpy as np
L2E_HI = float(np.float32(L2E))
L2E_LO = L2E - L2E_HI
LN2 = 0.6931471805599453

def wave_reduce(A, regs, op="v_add_f32"):
    steps = ["row_shr:1 row_mask:0xf bank_mask:0xf bound_ctrl:0",
             "row_shr:2 row_mask:0xf bank_mask:0xf bound_ctrl:0",
             "row_shr:4 row_mask:0xf bank_mask:0xf bound_ctrl:0",
             "row_shr:8 row_mask:0xf bank_mask:0xf bound_ctrl:0",
             "row_bcast:15 row_mask:0xa bank_mask:0xf",
             "row_bcast:31 row_mask:0xc bank_mask:0xf"]
    pad = max(0, 2 - (len(regs) - 1))
    A.nop(2)
    for st in steps:
        for r in regs:
            A(f"{op}_dpp v{r}, v{r}, v{r} {st}")
        A.nop(pad)

DBGSTAMP = [False]
NLAUNCH = [4]
def stamp(A, slot, idx, sreg=90, diag=False):
    if not diag:
        return
    if DBGSTAMP[0]:
        lab = A.newlabel("ST")
        A("s_cmp_lg_u32 s2, 0")
        A(f"s_cbranch_scc1 {lab}")
        A(f"s_memrealtime s[{sreg}:{sreg+1}]")
        A(f"s_add_u32 s{sreg+4}, s{S_DBG}, {512*(NLAUNCH[0]-1-slot)}")
        A(f"s_addc_u32 s{sreg+5}, s{S_DBG+1}, 0")
        A("s_waitcnt lgkmcnt(0)")
        A(f"v_mov_b32 v{diag}, s{sreg}")
        A(f"v_mov_b32 v{diag+2}, {16*slot+4*idx}")
        A(f"s_mov_b64 s[{sreg+6}:{sreg+7}], exec")
        A("s_mov_b64 exec, 1")
        A(f"global_store_dword v{diag+2}, v{diag}, s[{sreg+4}:{sreg+5}]")
        A(f"s_mov_b64 exec, s[{sreg+6}:{sreg+7}]")
        A.label(lab)
        return
    A(f"s_memrealtime s[{sreg}:{sreg+1}]")
    A(f"s_memtime s[{sreg+8}:{sreg+9}]")
    A(f"s_lshl_b32 s{sreg+2}, s2, 6")
    A(f"s_add_u32 s{sreg+2}, s{sreg+2}, 0x{WS_TS + slot*65536 + idx*8:x}")
    A(f"s_add_u32 s{sreg+4}, s{S_WS}, s{sreg+2}")
    A(f"s_addc_u32 s{sreg+5}, s{S_WS+1}, 0")
    A("s_waitcnt lgkmcnt(0)")
    A(f"v_mov_b32 v{diag}, s{sreg}")
    A(f"v_mov_b32 v{diag+1}, s{sreg+8}")
    A(f"v_mov_b32 v{diag+2}, 0")
    A(f"s_mov_b64 s[{sreg+6}:{sreg+7}], exec")
    A("s_mov_b64 exec, 1")
    A(f"global_store_dwordx2 v{diag+2}, v[{diag}:{diag+1}], s[{sreg+4}:{sreg+5}]")
    A(f"s_mov_b64 exec, s[{sreg+6}:{sreg+7}]")

PF = {"k1": [], "k2": [], "k3": [], "code": True}
def pf_setup(A, sd1, sd2):
    srd(A, sd1, S_W1, 512 * 1792 * 2)
    srd(A, sd2, S_W2, 512 * 1792 * 2)
def pf_issue(A, plan, swave, sd1, sd2, vtmp, vdst, stmp, lane=1):
    if not plan:
        return
    A(f"v_lshlrev_b32 v{vtmp}, 7, v{lane}")
    A(f"s_lshr_b32 s{stmp}, s2, 3")
    A(f"s_lshl_b32 s{stmp}, s{stmp}, 13")
    for rnd in plan:
        for buf in (1, 2):
            ent = [(w, e[1]) for w, e in enumerate(rnd) if e and e[0] == buf]
            if not ent:
                continue
            A(f"s_mov_b32 s{stmp+1}, 0x40000000")
            for w, piece in ent:
                A(f"s_cmp_eq_u32 s{swave}, {w}")
                A(f"s_cselect_b32 s{stmp+1}, 0x{piece*32*8192:x}, s{stmp+1}")
            A(f"s_add_u32 s{stmp+1}, s{stmp+1}, s{stmp}")
            sd = sd1 if buf == 1 else sd2
            A(f"buffer_load_dword v{vdst}, v{vtmp}, s[{sd}:{sd+3}], s{stmp+1} offen")
def code_prefetch(A, first_label, end_label, vtmp, vdst, sp):
    lab = A.newlabel("PC")
    A(f"s_getpc_b64 s[{sp}:{sp+1}]")
    A.label(lab)
    A(f"s_sub_u32 s{sp}, s{sp}, {lab}-{first_label}")
    A(f"s_subb_u32 s{sp+1}, s{sp+1}, 0")
    A(f"v_lshlrev_b32 v{vtmp}, 7, v0")
    A(f"v_min_u32 v{vtmp}, {end_label}-{first_label}-4, v{vtmp}")
    A(f"global_load_dword v{vdst}, v{vtmp}, s[{sp}:{sp+1}]")
STORE_FLAGS = {"h": "", "ht": "", "xt": "", "out": ""}
WS_RS = 0x508000
class VmTrack:
    def __init__(self): self.ops = []
    def issue(self, tag, n=1): self.ops += [tag] * n
    def count_after(self, tag):
        idx = max(i for i, t in enumerate(self.ops) if t == tag)
        return len(self.ops) - 1 - idx

def stamp_dyn(A, slot, sidx, sreg=90, diag=False):
    if not diag or DBGSTAMP[0]:
        return
    A(f"s_memrealtime s[{sreg}:{sreg+1}]")
    A(f"s_memtime s[{sreg+8}:{sreg+9}]")
    A(f"s_lshl_b32 s{sreg+2}, s2, 6")
    A(f"s_lshl_b32 s{sreg+3}, s{sidx}, 3")
    A(f"s_add_u32 s{sreg+2}, s{sreg+2}, s{sreg+3}")
    A(f"s_add_u32 s{sreg+2}, s{sreg+2}, 0x{WS_TS + slot*65536:x}")
    A(f"s_add_u32 s{sreg+4}, s{S_WS}, s{sreg+2}")
    A(f"s_addc_u32 s{sreg+5}, s{S_WS+1}, 0")
    A("s_waitcnt lgkmcnt(0)")
    A(f"v_mov_b32 v{diag}, s{sreg}")
    A(f"v_mov_b32 v{diag+1}, s{sreg+8}")
    A(f"v_mov_b32 v{diag+2}, 0")
    A(f"s_mov_b64 s[{sreg+6}:{sreg+7}], exec")
    A("s_mov_b64 exec, 1")
    A(f"global_store_dwordx2 v{diag+2}, v[{diag}:{diag+1}], s[{sreg+4}:{sreg+5}]")
    A(f"s_mov_b64 exec, s[{sreg+6}:{sreg+7}]")
```

```python
from common import *
import os

XROW = 528
TBL = 56 * XROW
K1_LDS = 2 * TBL
K1_THREADS = 768
K1_GRID = 256

def cmul(d, x, y):
    return [f"v_pk_mul_f32 v[{d}:{d+1}], v[{x}:{x+1}], v[{y}:{y+1}] op_sel:[0,0] op_sel_hi:[1,0]",
            f"v_pk_fma_f32 v[{d}:{d+1}], v[{x}:{x+1}], v[{y}:{y+1}], v[{d}:{d+1}] op_sel:[1,1,0] op_sel_hi:[0,1,1] neg_lo:[0,1,0]"]

XROWS = list(range(8)) + [256 + e for e in (0, 0, 2, 4, 4, 4, 6, 8)] + [516, 520, 1032, 1288, 772, 776, 1544, 1800]

def exp_bf16(A, x, t, e, s_l2e, s_l2elo, s_ln2):
    A(f"v_mul_f32 v{t}, s{s_l2e}, v{x}")
    A(f"v_fma_f32 v{e}, v{x}, s{s_l2e}, -v{t}")
    A(f"v_fma_f32 v{e}, v{x}, s{s_l2elo}, v{e}")
    A(f"v_exp_f32 v{t}, v{t}")
    A(f"v_mul_f32 v{e}, s{s_ln2}, v{e}")
    A(f"v_fma_f32 v{t}, v{t}, v{e}, v{t}")
    A(f"v_cvt_pk_bf16_f32 v{t}, v{t}, v{t}")
    A(f"v_lshlrev_b32 v{x}, 16, v{t}")

def anchors(A, lst, ar=8, ai=9, tmp=40):
    for k, (z, p) in enumerate(lst):
        A(f"v_mul_f32 v{tmp+2*k}, {fhex(-p*L2E)}, v{ar}")
        A(f"v_mul_f32 v{tmp+2*k+1}, {fhex(p/(2*math.pi))}, v{ai}")
    for k, (z, p) in enumerate(lst):
        A(f"v_exp_f32 v{tmp+2*k}, v{tmp+2*k}")
        A(f"v_fract_f32 v{tmp+2*k+1}, v{tmp+2*k+1}")
    for k, (z, p) in enumerate(lst):
        A(f"v_cos_f32 v{z}, v{tmp+2*k+1}")
        A(f"v_sin_f32 v{z+1}, v{tmp+2*k+1}")
    A("s_nop 0")
    for k, (z, p) in enumerate(lst):
        A(f"v_mul_f32 v{z}, v{z}, v{tmp+2*k}")
        A(f"v_mul_f32 v{z+1}, v{z+1}, v{tmp+2*k}")

def chain(A, ops, reg, outfn, first_outs, G=3):
    free = list(range(50, 120, 2))
    fixed = set(reg)
    lastuse = {}
    for k, (d, x, y) in enumerate(ops):
        lastuse[x] = k // G; lastuse[y] = k // G; lastuse.setdefault(d, k // G)
    pend = []
    for nm in first_outs: pend += outfn(nm, reg[nm])
    for k in range(0, len(ops), G):
        grp = ops[k:k+G]
        for (d, x, y) in grp:
            assert x in reg and y in reg, (d, x, y)
        code = []
        for (d, x, y) in grp:
            if d not in reg: reg[d] = free.pop(0)
            code.append(cmul(reg[d], reg[x], reg[y]))
        for c in code: A(c[0])
        for c in code: A(c[1])
        for ln in pend: A(ln)
        pend = []
        for (d, x, y) in grp:
            pend += outfn(d, reg[d])
        for nm in list(reg):
            if nm not in fixed and lastuse[nm] <= k // G - 1:
                free.append(reg.pop(nm))
    for ln in pend: A(ln)

def gen_k1(A, name, diag=False):
    kernel_begin(A, name)
    load_kernargs(A)
    A("s_cmp_ge_u32 s2, 256")
    A("s_cbranch_scc1 K1_END")
    if PF["code"]:
        code_prefetch(A, name, "CODE_END", 126, 127, 70)
    A("v_lshrrev_b32 v2, 6, v0")
    A("v_and_b32 v1, 63, v0")
    A("v_readfirstlane_b32 s5, v2")
    A("s_nop 3")
    A("s_cmp_lt_u32 s5, 8")
    A("s_cbranch_scc1 K1_KGEN")
    A("s_sub_u32 s5, s5, 8")
    if os.environ.get("K1_PRIO", "1") == "1": A("s_setprio 3")
    A("s_lshl_b32 s3, s2, 13")
    A("s_add_u32 s4, s3, 4096")
    A("s_lshl_b32 s6, s5, 11")
    A("v_lshlrev_b32 v3, 4, v1")
    A("v_add_u32 v3, s6, v3")
    A("v_subrev_u32 v0, 512, v0")
    A("v_lshlrev_b32 v4, 2, v0")
    A("s_waitcnt lgkmcnt(0)")
    stamp(A, 0, 0, diag=diag)
    srd(A, 8, S_X, 2048 * 512 * 2)
    srd(A, 12, S_WS, WS_SIZE)
    A("buffer_load_dwordx4 v[8:11], v3, s[8:11], s3 offen")
    A("buffer_load_dwordx4 v[12:15], v3, s[8:11], s3 offen offset:1024")
    for r in range(8):
        A(f"buffer_load_dword v{16+r}, v4, s[8:11], s{3 if r < 4 else 4} offen offset:{(r % 4) * 1024}")
    pf_setup(A, 72, 76)
    A("s_mov_b32 s6, 0x05040100")
    A("s_mov_b32 s7, 0x07060302")
    A("v_lshlrev_b32 v5, 5, v0")
    A("s_waitcnt vmcnt(8)")
    for row in range(2):
        for i in range(4):
            A(f"v_lshlrev_b32 v{24+8*row+2*i}, 16, v{8+4*row+i}")
            A(f"v_and_b32 v{24+8*row+2*i+1}, 0xffff0000, v{8+4*row+i}")
    for row in range(2):
        b = 24 + 8 * row
        A(f"v_add_f32 v{40+row}, v{b}, v{b+1}")
        A(f"v_add_f32 v{42+row}, v{b+2}, v{b+3}")
        A(f"v_add_f32 v{44+row}, v{b+4}, v{b+5}")
        A(f"v_add_f32 v{46+row}, v{b+6}, v{b+7}")
    for row in range(2):
        A(f"v_add_f32 v{40+row}, v{40+row}, v{42+row}")
        A(f"v_add_f32 v{44+row}, v{44+row}, v{46+row}")
    for row in range(2):
        A(f"v_add_f32 v{40+row}, v{40+row}, v{44+row}")
    wave_reduce(A, [40, 41])
    for row in range(2):
        A(f"v_mul_f32 v{40+row}, {fhex(1/512)}, v{40+row}")
    A("s_nop 0")
    A("v_readlane_b32 s42, v40, 63")
    A("v_readlane_b32 s43, v41, 63")
    A("s_waitcnt vmcnt(0)")
    for j in range(4):
        A(f"v_perm_b32 v{48+j}, v{16+2*j+1}, v{16+2*j}, s6")
        A(f"v_perm_b32 v{52+j}, v{16+2*j+1}, v{16+2*j}, s7")
    if WS_XT:
        A(f"s_add_u32 s44, s3, 0x{WS_XT:x}")
    else:
        A("s_mov_b32 s44, s3")
    sfx = STORE_FLAGS["xt"]
    A(f"buffer_store_dwordx4 v[48:51], v5, s[12:15], s44 offen{sfx}")
    A(f"buffer_store_dwordx4 v[52:55], v5, s[12:15], s44 offen offset:16{sfx}")
    pf_issue(A, PF["k1"], 5, 72, 76, 126, 127, 80)
    if PF.get("touch2"):
        A("v_lshlrev_b32 v126, 7, v1")
        A("v_cmp_gt_u32 vcc, 14, v1")
        A("s_lshl_b32 s81, s2, 2")
        A("s_add_u32 s81, s81, s5")
        A(f"s_mul_i32 s81, s81, {14*128}")
        A("s_and_saveexec_b64 s[82:83], vcc")
        A("buffer_load_dword v127, v126, s[76:79], s81 offen")
        A("s_mov_b64 exec, s[82:83]")
    for row in range(2):
        b = 24 + 8 * row
        for i in range(8):
            A(f"v_subrev_f32 v{b+i}, s{42+row}, v{b+i}")
    for row in range(2):
        b = 24 + 8 * row
        A(f"v_mul_f32 v{42+row}, v{b}, v{b}")
        A(f"v_mul_f32 v{44+row}, v{b+1}, v{b+1}")
    for i in range(2, 8, 2):
        for row in range(2):
            b = 24 + 8 * row
            A(f"v_fmac_f32 v{42+row}, v{b+i}, v{b+i}")
            A(f"v_fmac_f32 v{44+row}, v{b+i+1}, v{b+i+1}")
    for row in range(2):
        A(f"v_add_f32 v{42+row}, v{42+row}, v{44+row}")
    wave_reduce(A, [42, 43])
    for row in range(2):
        A(f"v_mul_f32 v{42+row}, {fhex(1/512)}, v{42+row}")
    A("v_cvt_pk_bf16_f32 v44, v40, v41")
    A("v_cvt_pk_bf16_f32 v45, v42, v43")
    A("v_lshlrev_b32 v56, 16, v44")
    A("v_and_b32 v58, 0xffff0000, v44")
    A("v_lshlrev_b32 v42, 16, v45")
    A("v_and_b32 v43, 0xffff0000, v45")
    A(f"v_add_f32 v42, {fhex(1e-5)}, v42")
    A(f"v_add_f32 v43, {fhex(1e-5)}, v43")
    A("v_cvt_pk_bf16_f32 v45, v42, v43")
    A("v_lshlrev_b32 v42, 16, v45")
    A("v_and_b32 v43, 0xffff0000, v45")
    A("v_sqrt_f32 v42, v42")
    A("v_sqrt_f32 v43, v43")
    A("s_nop 0")
    A("v_cvt_pk_bf16_f32 v45, v42, v43")
    A("v_lshlrev_b32 v42, 16, v45")
    A("v_and_b32 v43, 0xffff0000, v45")
    A("v_rcp_f32 v57, v42")
    A("v_rcp_f32 v59, v43")
    A("s_lshl_b32 s44, s2, 4")
    A("s_lshl_b32 s49, s5, 12")
    A("s_add_u32 s44, s44, s49")
    A(f"s_add_u32 s44, s44, 0x{WS_MS:x}")
    A("s_mov_b32 exec_lo, 0")
    A("s_mov_b32 exec_hi, 0x80000000")
    A("buffer_store_dwordx4 v[56:59], off, s[12:15], s44")
    A("s_mov_b64 exec, -1")
    stamp(A, 0, 1, diag=diag)
    A("s_barrier")
    if diag:
        A("s_waitcnt vmcnt(0)")
        stamp(A, 0, 5, diag=diag)
    A("s_endpgm")

    A.label("K1_KGEN")
    A("s_bfe_u32 s6, s5, 0x10001")
    A("s_and_b32 s7, s5, 1")
    A("s_lshl_b32 s3, s2, 1")
    A("s_add_u32 s3, s3, s6")
    A("s_lshl_b32 s4, s3, 8")
    A("s_lshl_b32 s44, s7, 7")
    A("v_lshlrev_b32 v3, 1, v1")
    A("v_add_u32 v3, s44, v3")
    A("s_lshl_b32 s45, s2, 2")
    A("s_waitcnt lgkmcnt(0)")
    A(f"s_load_dword s46, s[{S_LDT}:{S_LDT+1}], s45")
    srd(A, 8, S_LAR, 512 * 128 * 2)
    srd(A, 48, S_AIM, 512 * 128 * 2)
    A("buffer_load_ushort v8, v3, s[8:11], s4 offen")
    A("buffer_load_ushort v9, v3, s[48:51], s4 offen")
    A("s_cmp_lt_u32 s5, 4")
    A("s_cbranch_scc1 K1_NOC")
    srd(A, 52, S_CR, 512 * 128 * 2)
    srd(A, 56, S_CI, 512 * 128 * 2)
    A("v_xor_b32 v4, 128, v3")
    A("buffer_load_ushort v10, v3, s[52:55], s4 offen")
    A("buffer_load_ushort v11, v3, s[56:59], s4 offen")
    A("buffer_load_ushort v12, v4, s[52:55], s4 offen")
    A("buffer_load_ushort v13, v4, s[56:59], s4 offen")
    A.label("K1_NOC")
    srd(A, 12, S_WS, WS_SIZE)
    A(f"s_mov_b32 s60, {fhex(L2E_HI)}")
    A(f"s_mov_b32 s61, {fhex(L2E_LO)}")
    A(f"s_mov_b32 s62, {fhex(LN2)}")
    A(f"s_mul_i32 s63, s6, {TBL}")
    A("v_lshlrev_b32 v5, 1, v3")
    A("v_add_u32 v5, s63, v5")
    A("v_and_b32 v6, 15, v1")
    A(f"v_mul_u32_u24 v6, {XROW}, v6")
    A("v_lshrrev_b32 v7, 4, v1")
    A("v_lshl_add_u32 v6, v7, 4, v6")
    A("s_lshr_b32 s64, s5, 2")
    A(f"s_mul_i32 s65, s64, {16*XROW}")
    A("s_add_u32 s65, s65, s63")
    A("v_add_u32 v18, s65, v6")
    A(f"s_mul_i32 s65, s7, {16*XROW}")
    A("s_add_u32 s65, s65, s63")
    A(f"s_add_u32 s65, s65, {24*XROW}")
    A("v_add_u32 v19, s65, v6")
    A("s_waitcnt lgkmcnt(0)")
    A("s_lshl_b32 s47, s46, 16")
    A("s_and_b32 s46, s46, 0xffff0000")
    A("s_cmp_eq_u32 s6, 0")
    A("s_cselect_b32 s46, s47, s46")
    A("v_mov_b32 v14, s46")
    exp_bf16(A, 14, 15, 16, 60, 61, 62)
    cv = [120]
    def cvt(r, neg):
        t = cv[0]; cv[0] = 120 + (cv[0] - 120 + 1) % 6
        return t, f"v_cvt_pk_f16_f32 v{t}, v{r}, {'-' if neg else ''}v{r+1}"
    A("s_cmp_lt_u32 s5, 4")
    A("s_cbranch_scc0 K1_X")
    A("v_mov_b32 v17, 0x00003c00")
    A(f"ds_write_b32 v5, v17 offset:{24*XROW}")
    A("s_waitcnt vmcnt(0)")
    stamp(A, 0, 2, diag=diag)
    A("v_lshlrev_b32 v8, 16, v8")
    A("v_lshlrev_b32 v9, 16, v9")
    exp_bf16(A, 8, 16, 17, 60, 61, 62)
    A("v_mul_f32 v9, v9, v14")
    A("v_mul_f32 v8, v8, v14")
    anchors(A, [(20, 8), (22, 32), (24, 128)])
    def outY(nm, r):
        t, c = cvt(r, False)
        return [c, f"ds_write_b32 v5, v{t} offset:{(24+int(nm[1:]))*XROW}"]
    ops = [("y2", "y1", "y1"), ("y5", "y4", "y1"), ("y8", "y4", "y4"),
           ("y3", "y2", "y1"), ("y6", "y4", "y2"), ("y12", "y8", "y4"),
           ("y7", "y4", "y3"), ("y9", "y8", "y1"), ("y10", "y8", "y2"),
           ("y11", "y8", "y3"), ("y13", "y12", "y1"), ("y14", "y12", "y2"),
           ("y15", "y12", "y3"), ("y17", "y16", "y1"), ("y18", "y16", "y2")]
    ops += [(f"y{16+o}", "y16", f"y{o}") for o in range(3, 16)]
    chain(A, ops, {"y1": 20, "y4": 22, "y16": 24}, outY, ["y1", "y4", "y16"])
    A("s_branch K1_MM")
    A.label("K1_X")
    A("s_waitcnt vmcnt(0)")
    A("v_and_b32 v15, 0x7fff, v10")
    A("v_and_b32 v16, 0x7fff, v11")
    A("v_and_b32 v17, 0x7fff, v12")
    A("v_and_b32 v13, 0x7fff, v13")
    A("v_max_u32 v15, v15, v16")
    A("v_max_u32 v17, v17, v13")
    A("v_max_u32 v15, v15, v17")
    A("v_lshlrev_b32 v8, 16, v8")
    A("v_lshlrev_b32 v9, 16, v9")
    steps = ["row_shr:1 row_mask:0xf bank_mask:0xf bound_ctrl:0", "row_shr:2 row_mask:0xf bank_mask:0xf bound_ctrl:0",
             "row_shr:4 row_mask:0xf bank_mask:0xf bound_ctrl:0", "row_shr:8 row_mask:0xf bank_mask:0xf bound_ctrl:0",
             "row_bcast:15 row_mask:0xa bank_mask:0xf", "row_bcast:31 row_mask:0xc bank_mask:0xf"]
    B = Asm()
    exp_bf16(B, 8, 16, 17, 60, 61, 62)
    B("v_mul_f32 v9, v9, v14")
    B("v_mul_f32 v8, v8, v14")
    B("v_lshlrev_b32 v10, 16, v10")
    B("v_lshlrev_b32 v11, 16, v11")
    for i, st in enumerate(steps):
        A(f"v_max_u32_dpp v15, v15, v15 {st}")
        A(B.lines[2 * i]); A(B.lines[2 * i + 1])
    A("v_readlane_b32 s46, v15, 63")
    anchors(A, [(20, 1), (22, 8), (24, 256)])
    A("s_lshr_b32 s46, s46, 7")
    A("s_min_u32 s46, s46, 253")
    A("s_max_u32 s46, s46, 1")
    A("s_sub_u32 s47, 254, s46")
    A("s_lshl_b32 s47, s47, 23")
    A("s_lshl_b32 s46, s46, 23")
    A("v_mul_f32 v30, s47, v10")
    A("v_mul_f32 v31, s47, v11")
    A("v_mul_f32 v16, s46, v14")
    A("v_add_f32 v16, v16, v16")
    def outX(nm, r):
        if nm[0] != "x": return []
        t, c = cvt(r, True)
        return [c] + [f"ds_write_b32 v5, v{t} offset:{row*XROW}" for row, b in enumerate(XROWS) if b == int(nm[1:])]
    ops = [("z2", "z1", "z1"), ("x256", "x0", "z256"), ("x1", "x0", "z1"),
           ("z4", "z2", "z2"), ("x264", "x256", "z8"), ("x2", "x0", "z2"),
           ("x3", "x1", "z2"), ("x520", "x264", "z256"), ("x4", "x0", "z4"),
           ("x5", "x1", "z4"), ("x776", "x520", "z256"), ("x260", "x256", "z4"),
           ("x6", "x2", "z4"), ("x1032", "x776", "z256"), ("x516", "x260", "z256"),
           ("x7", "x3", "z4"), ("x1288", "x1032", "z256"), ("x258", "x256", "z2"),
           ("x772", "x516", "z256"), ("x1544", "x1288", "z256"), ("x262", "x258", "z4"),
           ("x1800", "x1544", "z256")]
    chain(A, ops, {"z1": 20, "z8": 22, "z256": 24, "x0": 30}, outX, ["x0"])
    A("s_lshl_b32 s45, s3, 2")
    A(f"s_add_u32 s45, s45, 0x{WS_SC:x}")
    A("s_mov_b64 exec, 1")
    A("buffer_store_dword v16, off, s[12:15], s45")
    A("s_mov_b64 exec, -1")
    A.label("K1_MM")
    A("v_and_b32 v6, 15, v1")
    A("s_lshl_b32 s44, s7, 4")
    A("v_add_u32 v6, s44, v6")
    A("v_lshrrev_b32 v8, 1, v7")
    A("v_lshl_add_u32 v8, v8, 5, v6")
    A("v_and_b32 v9, 1, v7")
    A("v_lshlrev_b32 v9, 3, v9")
    A("v_lshl_add_u32 v8, v8, 4, v9")
    A("v_lshl_add_u32 v9, v7, 5, v6")
    A("v_lshlrev_b32 v9, 3, v9")
    A("v_add_u32 v9, 1024, v9")
    A("v_cmp_lt_u32 vcc, 1, v7")
    A("v_mov_b32 v10, 0x40000000")
    A("s_lshl_b32 s44, s3, 11")
    A(f"s_add_u32 s44, s44, 0x{WS_KC:x}")
    A("v_cndmask_b32 v9, v9, v10, vcc")
    A("s_cmp_eq_u32 s64, 0")
    A("s_cselect_b64 vcc, -1, 0")
    A("v_cndmask_b32 v8, v9, v8, vcc")
    A("s_waitcnt lgkmcnt(0)")
    stamp(A, 0, 3, diag=diag)
    A("s_barrier")
    def rd(st):
        A(f"ds_read_b128 v[{32+8*st}:{35+8*st}], v18 offset:{64*st}")
        A(f"ds_read_b128 v[{36+8*st}:{39+8*st}], v19 offset:{64*st}")
    for st in range(7): rd(st)
    for st in range(8):
        issued = min(8, 7 + st)
        A(f"s_waitcnt lgkmcnt({2*(issued-st-1)})")
        d = 20 + 4 * (st % 2)
        cin = "0" if st < 2 else f"v[{d}:{d+3}]"
        A(f"v_mfma_f32_16x16x32_f16 v[{d}:{d+3}], v[{32+8*st}:{35+8*st}], v[{36+8*st}:{39+8*st}], {cin}")
        if st == 0: rd(7)
    A.nop(8)
    for i in range(4):
        A(f"v_add_f32 v{20+i}, v{20+i}, v{24+i}")
    A("v_cvt_pk_f16_f32 v28, v20, v21")
    A("v_cvt_pk_f16_f32 v29, v22, v23")
    A("buffer_store_dwordx2 v[28:29], v8, s[12:15], s44 offen")
    if diag:
        A("s_waitcnt vmcnt(0)")
    stamp(A, 0, 4, diag=diag)
    A.label("K1_END")
    A("s_endpgm")
    return kernel_desc(name, 136 if diag else 128)
```

```python
from common import *
import os

O_UR, O_KQ, O_T, O_WR, O_Y, CH = 0, 4608, 9472, 12544, 29184, 39424
CPY = 1216
WRS = 4160
K2_LDS = 2 * CH + 128
K2_THREADS = 512

class Sched:
    def __init__(self, A, lookahead):
        self.A = A; self.LA = lookahead
    def run(self, mf, loads, hooks={}):
        A = self.A
        first = {}; last = {}
        for i, (t, needs) in enumerate(mf):
            for n in needs:
                first.setdefault(n, i); last[n] = i
        order = sorted(first, key=lambda n: first[n])
        occupant = {}
        earliest = {}
        for n in order:
            key = loads[n][1]
            e = loads[n][2]
            if key in occupant: e = max(e, last[occupant[key]] + 1)
            occupant[key] = n
            earliest[n] = e
        q = []
        done = set()
        ptr = 0
        for i, (t, needs) in enumerate(mf):
            for ln in hooks.get(i, []): A(ln)
            def issue_upto(lim, maxn):
                nonlocal ptr
                k = 0
                while ptr < len(order) and first[order[ptr]] <= lim and earliest[order[ptr]] <= i and k < maxn:
                    n = order[ptr]
                    if len(q) + len(loads[n][0]) > 15:
                        break
                    for ln in loads[n][0]:
                        A(ln); q.append(n)
                    k += len(loads[n][0]); ptr += 1
            while any(n not in done and n not in q for n in needs):
                if len(q) + 2 > 15:
                    A("s_waitcnt lgkmcnt(8)"); done.update(q[:len(q)-8]); del q[:len(q)-8]
                issue_upto(i, 99)
            if i == 0: issue_upto(self.LA, 99)
            pend = [k for k, n in enumerate(q) if n in needs]
            if pend:
                keep = len(q) - 1 - max(pend)
                A(f"s_waitcnt lgkmcnt({keep})")
                done.update(q[:len(q) - keep]); del q[:len(q) - keep]
            A(t)
            issue_upto(i + self.LA, 2)

def gen_k2(A, name, diag=False):
    kernel_begin(A, name)
    load_kernargs(A)
    A("s_cmp_ge_u32 s2, 256")
    A("s_cbranch_scc1 K2_END")
    A("v_lshrrev_b32 v2, 6, v0")
    A("v_and_b32 v1, 63, v0")
    A("s_and_b32 s3, s2, 7")
    A("v_readfirstlane_b32 s5, v2")
    A("s_lshl_b32 s3, s3, 5")
    A("s_lshr_b32 s4, s2, 3")
    A("s_add_u32 s3, s3, s4")
    A("s_bfe_u32 s6, s5, 0x10001")
    A("s_and_b32 s7, s5, 1")
    A("s_lshr_b32 s4, s5, 2")
    A("s_lshl_b32 s4, s4, 1")
    A("s_or_b32 s7, s7, s4")
    A("s_lshl_b32 s4, s7, 6")
    A("v_add_u32 v2, s4, v1")
    A("s_lshl_b32 s43, s3, 1")
    A("s_add_u32 s43, s43, s6")
    A("v_lshlrev_b32 v3, 13, v2")
    A("v_lshlrev_b32 v4, 4, v2")
    A("v_lshlrev_b32 v5, 4, v1")
    A("v_lshlrev_b32 v6, 3, v1")
    A("s_lshl_b32 s42, s43, 4")
    if WS_XT: A(f"s_add_u32 s42, s42, 0x{WS_XT:x}")
    A("s_lshl_b32 s45, s43, 11")
    A(f"s_add_u32 s45, s45, 0x{WS_KC:x}")
    A(f"s_mov_b32 s44, 0x{WS_MS:x}")
    A("s_lshl_b32 s46, s3, 2")
    A("s_lshl_b32 s48, s43, 2")
    A(f"s_add_u32 s48, s48, 0x{WS_SC:x}")
    A(f"s_mul_i32 s50, s6, {CH}")
    A("s_waitcnt lgkmcnt(0)")
    stamp(A, 1, 0, diag=diag)
    srd(A, 12, S_WS, WS_SIZE)
    X, MS, P, Q = 32, 36, 52, 56
    A(f"buffer_load_dwordx4 v[{X}:{X+3}], v3, s[12:15], s42 offen")
    for i in range(4):
        if i: A("s_add_u32 s44, s44, 4096")
        A(f"buffer_load_dwordx4 v[{MS+4*i}:{MS+3+4*i}], v4, s[12:15], s44 offen")
    A(f"buffer_load_dwordx4 v[{P}:{P+3}], v5, s[12:15], s45 offen")
    A(f"buffer_load_dwordx2 v[{Q}:{Q+1}], v6, s[12:15], s45 offen offset:1024")
    A(f"s_load_dword s47, s[{S_DSK}:{S_DSK+1}], s46")
    A(f"s_load_dword s49, s[{S_WS}:{S_WS+1}], s48")
    pf_setup(A, 72, 76)
    A("s_and_b32 s69, s2, 7")
    A("s_mul_i32 s69, s69, 28")
    A("s_lshr_b32 s70, s2, 3")
    A("s_add_u32 s69, s69, s70")
    A("s_cmp_lt_u32 s5, 4")
    A("s_cbranch_scc1 K2_NOSTRIP")
    A("s_lshl_b32 s64, s5, 7")
    A("s_sub_u32 s64, s64, 512")
    A("v_add_u32 v7, s64, v1")
    A("v_mul_u32_u24 v7, 3584, v7")
    A("s_lshl_b32 s67, s69, 4")
    A("s_cmp_lt_u32 s70, 28")
    A("s_cselect_b32 s67, s67, 0x40000000")
    A(f"s_add_u32 s68, s67, {64*3584}")
    A("buffer_load_dwordx4 v[104:107], v7, s[72:75], s67 offen")
    A("buffer_load_dwordx4 v[108:111], v7, s[72:75], s68 offen")
    A("s_branch K2_STRIPD")
    A.label("K2_NOSTRIP")
    A("buffer_load_dword v232, off, s[72:75], 0")
    A("buffer_load_dword v233, off, s[72:75], 0")
    A.label("K2_STRIPD")
    for i in range(4):
        A(f"v_mov_b32 v{60+i}, 0")
    A("v_lshlrev_b32 v3, 4, v2")
    A("v_add_u32 v3, s50, v3")
    for r in range(3):
        A(f"ds_write_b128 v3, v[60:63] offset:{4096 + 4096*r}")
    A(f"v_mul_u32_u24 v4, {WRS}, v1")
    A("v_add_u32 v4, s50, v4")
    A("s_mov_b64 exec, 0xf")
    A(f"ds_write_b128 v4, v[60:63] offset:{O_WR + 257*16}")
    A("s_mov_b64 exec, -1")
    A("v_sub_u32 v4, 255, v2")
    A("v_lshlrev_b32 v4, 4, v4")
    A("v_add_u32 v4, s50, v4")
    A(f"s_mul_i32 s51, s7, {CPY}")
    A("s_add_u32 s51, s51, s50")
    A(f"s_add_u32 s51, s51, {O_KQ}")
    A("v_add_u32 v5, s51, v5")
    A("v_mov_b32 v7, s51")
    A(f"s_add_u32 s52, s51, {1056-24}")
    A("v_writelane_b32 v7, s52, 1")
    A("v_lshlrev_b32 v8, 1, v1")
    A(f"s_add_u32 s52, s50, {O_T}")
    A("v_sub_u32 v8, s52, v8")
    A("v_and_b32 v9, 31, v1")
    A("v_and_b32 v10, 1, v1")
    A("v_lshrrev_b32 v9, 1, v9")
    A("v_lshrrev_b32 v11, 5, v1")
    A("v_lshl_add_u32 v9, v11, 5, v9")
    A("v_lshlrev_b32 v9, 1, v9")
    A("v_lshlrev_b32 v10, 10, v10")
    A("v_add_u32 v9, v9, v10")
    A("v_sub_u32 v9, s52, v9")
    A("v_sub_u32 v10, 255, v2")
    A("v_lshrrev_b32 v11, 1, v10")
    A("v_and_b32 v10, 1, v10")
    A("v_mul_u32_u24 v11, 80, v11")
    A("v_lshl_add_u32 v14, v10, 5, v11")
    A("v_add_u32 v14, s50, v14")
    A("v_lshrrev_b32 v10, 4, v2")
    A("v_and_b32 v11, 15, v2")
    A("v_lshlrev_b32 v10, 17, v10")
    A("v_lshl_add_u32 v15, v11, 4, v10")
    A("s_lshl_b32 s53, s43, 8")
    A(f"s_add_u32 s53, s53, 0x{WS_HT:x}")
    A("v_and_b32 v220, 15, v1")
    A("v_lshrrev_b32 v221, 4, v1")
    A("v_sub_u32 v222, 16, v220")
    A("v_and_b32 v223, 3, v222")
    A("v_sub_u32 v222, v222, v223")
    A("v_lshlrev_b32 v222, 1, v222")
    A(f"v_mul_u32_u24 v223, {CPY}, v223")
    A("v_add_u32 v222, v222, v223")
    A("v_lshl_add_u32 v222, v221, 4, v222")
    A(f"s_add_u32 s51, s50, {O_KQ}")
    A("v_add_u32 v222, s51, v222")
    A("v_lshlrev_b32 v223, 5, v220")
    A("s_add_u32 s51, s50, 480")
    A("v_sub_u32 v223, s51, v223")
    A("v_lshl_add_u32 v223, v221, 4, v223")
    A("v_and_b32 v227, 1, v220")
    A("v_lshlrev_b32 v228, 2, v220")
    A("v_lshlrev_b32 v229, 3, v221")
    A("v_sub_u32 v229, v229, v228")
    A(f"s_add_u32 s51, s50, {O_T}")
    A("v_add_u32 v229, s51, v229")
    A("v_mul_u32_u24 v228, 252, v227")
    A(f"v_add_u32 v224, {60+252}, v229")
    A("v_sub_u32 v224, v224, v228")
    A(f"v_add_u32 v225, {512+64}, v229")
    A("v_add_u32 v225, v225, v228")
    A("v_sub_u32 v227, 0, v220")
    A("v_and_b32 v227, 3, v227")
    A("v_mul_u32_u24 v227, 254, v227")
    A("v_lshlrev_b32 v228, 1, v220")
    A("v_sub_u32 v227, v227, v228")
    A("v_lshl_add_u32 v227, v221, 3, v227")
    A(f"s_add_u32 s51, s51, {1024+32}")
    A("v_add_u32 v226, s51, v227")
    A("v_lshrrev_b32 v229, 2, v1")
    A("v_and_b32 v230, 3, v1")
    A("v_lshlrev_b32 v230, 3, v230")
    A(f"s_add_u32 s51, s50, {O_WR + 2*636}")
    A("v_add_u32 v227, s51, v230")
    A("v_lshlrev_b32 v231, 4, v229")
    A("v_sub_u32 v227, v227, v231")
    A(f"s_add_u32 s51, s50, {O_WR + 2*WRS + 2*(2040-768)}")
    A("v_add_u32 v228, s51, v230")
    A("v_lshlrev_b32 v231, 5, v229")
    A("v_sub_u32 v228, v228, v231")
    A("v_mul_u32_u24 v229, 80, v220")
    A(f"s_add_u32 s51, s50, {O_Y + 80*15}")
    A("v_sub_u32 v229, s51, v229")
    A("v_lshl_add_u32 v229, v221, 4, v229")
    AN, TF, BR, FA, ACC = 32, 104, 160, 184, 200
    A("v_lshlrev_b32 v230, 3, v221")
    A("v_sub_u32 v230, v230, v220")
    A("s_mov_b32 s59, 0xffff")
    A("s_mov_b32 s60, 0xffff0000")
    A("s_mov_b32 s61, -1")
    XE = AN + 68
    for i in range(4):
        A(f"v_cmp_eq_u32 s[62:63], {2-2*i}, v230")
        A(f"v_cmp_eq_u32 s[64:65], {3-2*i}, v230")
        A(f"v_cmp_eq_u32 s[66:67], {4-2*i}, v230")
        A(f"v_mov_b32 v231, s60")
        A(f"v_cndmask_b32 v{XE+i}, 0, v231, s[62:63]")
        A(f"v_mov_b32 v231, s61")
        A(f"v_cndmask_b32 v{XE+i}, v{XE+i}, v231, s[64:65]")
        A(f"v_mov_b32 v231, s59")
        A(f"v_cndmask_b32 v{XE+i}, v{XE+i}, v231, s[66:67]")
    A("s_mov_b32 s54, 0x03020302")
    A("s_waitcnt lgkmcnt(0)")
    A("s_barrier")
    if diag and os.environ.get("K2_ST"):
        stamp(A, 5, 0, diag=diag)
    A("s_lshl_b32 s55, s47, 16")
    A("s_and_b32 s47, s47, 0xffff0000")
    A("s_cmp_eq_u32 s6, 0")
    A("s_cselect_b32 s47, s55, s47")
    XF, UF, T = 16, 24, 64
    if diag and os.environ.get("K2_ST"):
        A("s_waitcnt vmcnt(6)")
        stamp(A, 4, 0, diag=diag)
        A("s_waitcnt vmcnt(0)")
        stamp(A, 4, 1, diag=diag)
    A("s_waitcnt vmcnt(4)")
    for j in range(4):
        A(f"v_lshlrev_b32 v{XF+2*j}, 16, v{X+j}")
        A(f"v_and_b32 v{XF+2*j+1}, 0xffff0000, v{X+j}")
    for r in range(8):
        A(f"v_sub_f32 v{UF+r}, v{XF+r}, v{MS+2*r}")
    for j in range(4):
        A(f"v_cvt_pk_bf16_f32 v{T+j}, v{UF+2*j}, v{UF+2*j+1}")
    for j in range(4):
        A(f"v_lshlrev_b32 v{UF+2*j}, 16, v{T+j}")
        A(f"v_and_b32 v{UF+2*j+1}, 0xffff0000, v{T+j}")
    for r in range(8):
        A(f"v_mul_f32 v{UF+r}, v{UF+r}, v{MS+2*r+1}")
    for j in range(4):
        A(f"v_cvt_pk_bf16_f32 v{T+j}, v{UF+2*j}, v{UF+2*j+1}")
    for j in range(4):
        A(f"v_lshlrev_b32 v{UF+2*j}, 16, v{T+j}")
        A(f"v_and_b32 v{UF+2*j+1}, 0xffff0000, v{T+j}")
    for j in range(4):
        A(f"v_cvt_pk_f16_f32 v{T+4+j}, v{UF+7-2*j}, v{UF+6-2*j}")
    A(f"ds_write_b128 v4, v[{T+4}:{T+7}]")
    N0, N1, QD = 72, 73, 76
    A("s_waitcnt vmcnt(2)")
    A(f"v_perm_b32 v{N0}, v{P+3}, v{P+3}, s54")
    A(f"v_readlane_b32 s56, v{P}, 0")
    A(f"v_readlane_b32 s57, v{P+1}, 0")
    A(f"v_mov_b32 v{N1}, v{N0}")
    A(f"v_readlane_b32 s59, v{Q}, 63")
    A(f"v_readlane_b32 s58, v{N0}, 63")
    A(f"v_mov_b32_dpp v{N0}, v{P} wave_shl:1 row_mask:0xf bank_mask:0xf")
    A(f"v_mov_b32_dpp v{N1}, v{P+1} wave_shl:1 row_mask:0xf bank_mask:0xf")
    def al(d, hi, lo): A(f"v_alignbit_b32 v{d}, v{hi}, v{lo}, 16")
    def mv(d, x): A(f"v_mov_b32 v{d}, v{x}")
    labs = [f"K2_Q{i}" for i in range(4)]
    for i in range(1, 4):
        A(f"s_cmp_eq_u32 s7, {i}")
        A(f"s_cbranch_scc1 {labs[i]}")
    for wq in range(4):
        A.label(labs[wq])
        if wq == 0:
            A(f"ds_write_b128 v5, v[{P}:{P+3}] offset:32")
            A(f"ds_write_b16_d16_hi v8, v{Q} offset:{2*95}")
            A(f"ds_write_b16_d16_hi v8, v{Q} offset:{256 + 2*93}")
            A("s_mov_b32 s60, 0"); A("s_mov_b32 s61, 0"); A("s_mov_b32 s62, s58"); A("s_and_b32 s63, s58, 0xffff")
        elif wq == 1:
            al(QD, P+1, P); al(QD+1, P+2, P+1); al(QD+2, P+3, P+2); al(QD+3, N0, P+3)
            A(f"ds_write_b128 v5, v[{QD}:{QD+3}] offset:32")
            A(f"ds_write_b16 v8, v{Q} offset:{512 + 2*97}")
            A(f"ds_write_b16 v8, v{Q} offset:{768 + 2*95}")
            A("s_mov_b32 s60, 0"); A("s_lshl_b32 s61, s56, 16"); A("s_mov_b32 s62, s58"); A("s_mov_b32 s63, 0")
        elif wq == 2:
            mv(QD, P+1); mv(QD+1, P+2); mv(QD+2, P+3); mv(QD+3, N0)
            A(f"ds_write_b128 v5, v[{QD}:{QD+3}] offset:32")
            for s_ in range(4):
                A(f"ds_write_b16 v9, v{Q+1} offset:{2048 + 254*s_ + 2*(128-64)}")
            A("s_mov_b32 s60, 0"); A("s_mov_b32 s61, s56"); A("s_and_b32 s62, s58, 0xffff"); A("s_mov_b32 s63, 0")
        else:
            al(QD, P+2, P+1); al(QD+1, P+3, P+2); al(QD+2, N0, P+3); al(QD+3, N1, N0)
            A(f"ds_write_b128 v5, v[{QD}:{QD+3}] offset:32")
            for s_ in range(4):
                A(f"ds_write_b16_d16_hi v9, v{Q+1} offset:{2048 + 254*s_ + 2*(128-80)}")
            A("s_lshl_b32 s60, s56, 16"); A("s_lshr_b32 s61, s56, 16"); A("s_lshl_b32 s57, s57, 16"); A("s_or_b32 s61, s61, s57")
            A("s_mov_b32 s62, 0"); A("s_mov_b32 s63, 0")
        if wq < 3: A("s_branch K2_QD")
    A.label("K2_QD")
    A("v_mov_b32 v80, s60")
    A("v_mov_b32 v81, s61")
    A("v_writelane_b32 v80, s62, 1")
    A("v_writelane_b32 v81, s63, 1")
    A("s_mov_b64 exec, 3")
    A("ds_write_b64 v7, v[80:81] offset:24")
    A("s_mov_b64 exec, -1")
    if diag and os.environ.get("K2_ST"):
        stamp(A, 4, 2, diag=diag)
    A("s_cmp_ge_u32 s5, 4")
    A("s_cbranch_scc1 K2_HELP")
    A("s_lshr_b32 s59, s59, 16")
    A("s_lshl_b32 s60, s59, 16")
    A("s_or_b32 s61, s59, s60")
    for i in range(4):
        A(f"v_and_b32 v{XE+i}, s61, v{XE+i}")
    A("s_waitcnt lgkmcnt(0)")
    A("s_barrier")
    stamp(A, 1, 1, diag=diag)
    A("s_bitcmp1_b32 s5, 0")
    A("s_cbranch_scc1 K2_PB")
    LA = int(os.environ.get("K2_LA", 6))
    for part, tiles in ((0, [0, 1, 2, 3, 4]), (1, [5, 6, 7])):
        if part: A.label("K2_PB")
        loads = {}; mf = []; started = set()
        def mfma(tau, a_, b_, needs):
            d = ACC + 4 * tiles.index(tau)
            cin = f"v[{d}:{d+3}]" if tau in started else "0"
            started.add(tau)
            mf.append((f"v_mfma_f32_16x16x32_f16 v[{d}:{d+3}], v[{a_}:{a_+3}], v[{b_}:{b_+3}], {cin}", needs))
        nb = 0
        for beta in range(8 * tiles[-1], -8, -1):
            uses = []
            for tau in reversed(tiles):
                s_ = 8 * tau - beta
                smax = min(16, 8 * tau + 7)
                if 0 <= s_ <= smax or (s_ == 32 and tau >= 4):
                    uses.append((tau, s_))
            if not uses: continue
            br = BR + 4 * (nb % 6); nb += 1
            loads[("B", beta)] = ([f"ds_read_b128 v[{br}:{br+3}], v223 offset:{64*(56-beta)}"], ("BR", br), 0)
            for tau, s_ in uses:
                if s_ == 32:
                    mfma(tau, XE, br, [("B", beta)])
                else:
                    ar = AN + 4 * s_
                    loads[("A", s_)] = ([f"ds_read_b64 v[{ar}:{ar+1}], v222 offset:{64*s_}", f"ds_read_b64 v[{ar+2}:{ar+3}], v222 offset:{64*s_+8}"], ("AN", ar), 0)
                    mfma(tau, ar, br, [("A", s_), ("B", beta)])
        nnear = len(mf)
        gate = max(0, nnear - LA)
        nf = 0; tfi = {}
        def tfrag(key, addr, off):
            if key not in tfi:
                r = TF + 4 * len(tfi); tfi[key] = r
                loads[("T",) + key] = ([f"ds_read_b64 v[{r}:{r+1}], v{addr} offset:{off}", f"ds_read_b64 v[{r+2}:{r+3}], v{addr} offset:{off+32}"], ("TF", r), 0)
            return tfi[key]
        def farA(key, addr, off0, P_):
            nonlocal nf
            r = FA + 4 * (nf % 4); nf += 1
            loads[("F",) + key] = ([f"ds_read_b64_tr_b16 v[{r}:{r+1}], v{addr} offset:{off0 + 32*P_}", f"ds_read_b64_tr_b16 v[{r+2}:{r+3}], v{addr} offset:{off0}"], ("FA", r), gate)
            return r
        for cls, (wi, off) in enumerate(((0, 16), (1, 12))):
            for j in range(6):
                us = [tau for tau in tiles if 2 <= tau - j <= 4]
                if not us: continue
                r = farA((cls, j), 227, wi * WRS + 2 * (off - 12) + 16 * 32 * (5 - j), 8)
                for tau in us:
                    t = tfrag((cls, tau - j), 224 + cls, 64 * (4 - (tau - j)))
                    mfma(tau, r, t, [("F", cls, j), ("T", cls, tau - j)])
        for cls, (wi, off) in enumerate(((2, 16), (3, 8))):
            for j in range(2):
                us = [tau for tau in tiles if 16 * tau - 32 * j >= 64]
                if not us: continue
                r = farA((2 + cls, j), 228, (wi - 2) * WRS + 2 * (off - 8) + 32 * 32 * (1 - j), 16)
                for tau in us:
                    Cp = 16 * tau - 32 * j
                    t = tfrag((2 + cls, Cp), 226, 1024 * cls + 2 * (112 - Cp))
                    mfma(tau, r, t, [("F", 2 + cls, j), ("T", 2 + cls, Cp)])
        Sched(A, LA).run(mf, loads, hooks={gate: ["s_barrier"]})
        A.c(f"part {part}: {len(mf)} mfma, near {nnear}")
        if part == 0: stamp(A, 1, 2, diag=diag)
        for r in range(8):
            A(f"v_mul_f32 v{UF+r}, s47, v{UF+r}")
        for tau in tiles:
            d = ACC + 4 * tiles.index(tau)
            A(f"ds_write_b128 v229, v[{d}:{d+3}] offset:{16*80*(7-tau)}")
        if part == 0: A("s_branch K2_EPI")
    A("s_branch K2_EPI")
    A.label("K2_HELP")
    A("s_and_b32 s51, s5, 1")
    A("s_lshl_b32 s51, s51, 10")
    A("s_add_u32 s51, s51, s50")
    A("v_lshlrev_b32 v4, 4, v1")
    A("v_add_u32 v4, s51, v4")
    A("s_sub_u32 s51, s5, 4")
    A("s_waitcnt lgkmcnt(0)")
    A("s_barrier")
    E = [32, 64]
    for rnd, c0 in enumerate((129, 1)):
        e = E[rnd]
        A(f"ds_read_b64 v[{e}:{e+1}], v4 offset:{16*c0-8}")
        A(f"ds_read_b128 v[{e+2}:{e+5}], v4 offset:{16*c0}")
        A(f"ds_read_b64 v[{e+6}:{e+7}], v4 offset:{16*c0+16}")
    for rnd, c0 in enumerate((129, 1)):
        e = E[rnd]
        Ei = lambda i: e + 2 + i
        Oi = lambda i: e + 10 + i
        W = [e + 16, e + 20, e + 24, e + 28]
        A(f"s_waitcnt lgkmcnt({3 if rnd == 0 else 4})")
        for i in range(-2 if rnd == 0 else -1, 5 if rnd == 0 else 4):
            A(f"v_alignbit_b32 v{Oi(i)}, v{Ei(i+1)}, v{Ei(i)}, 16")
        def addw(dst, src, x, y):
            for i in range(4):
                A(f"v_pk_add_f16 v{dst+i}, v{src(i)}, v{x(i)}")
            for i in range(4):
                A(f"v_pk_add_f16 v{dst+i}, v{dst+i}, v{y(i)}")
        addw(W[0], lambda i: Oi(i-1), Ei, Oi)
        A(f"ds_write_b128 v4, v[{W[0]}:{W[0]+3}] offset:{O_WR + 1*WRS + 16*c0}")
        addw(W[1], lambda i: W[0]+i, lambda i: Ei(i-1), lambda i: Ei(i+1))
        A(f"ds_write_b128 v4, v[{W[1]}:{W[1]+3}] offset:{O_WR + 0*WRS + 16*c0}")
        if rnd == 0:
            addw(W[2], lambda i: W[1]+i, lambda i: Oi(i-2), lambda i: Oi(i+1))
            A(f"ds_write_b128 v4, v[{W[2]}:{W[2]+3}] offset:{O_WR + 3*WRS + 16*c0}")
            addw(W[3], lambda i: W[2]+i, lambda i: Ei(i-2), lambda i: Ei(i+2))
            A(f"ds_write_b128 v4, v[{W[3]}:{W[3]+3}] offset:{O_WR + 2*WRS + 16*c0}")
    for r in range(8):
        A(f"v_mul_f32 v{UF+r}, s47, v{UF+r}")
    A("s_waitcnt lgkmcnt(0)")
    A("s_barrier")
    A("s_waitcnt vmcnt(0)")
    pf_issue(A, PF["k2"], 51, 72, 76, 100, 101, 80)
    for q in range(4):
        A(f"v_lshlrev_b32 v{48+2*q}, 16, v{104+q}")
        A(f"v_and_b32 v{49+2*q}, 0xffff0000, v{104+q}")
        A(f"v_lshlrev_b32 v{56+2*q}, 16, v{108+q}")
        A(f"v_and_b32 v{57+2*q}, 0xffff0000, v{108+q}")
    for e in range(8):
        A(f"v_add_f32 v{48+e}, v{48+e}, v{56+e}")
    wave_reduce(A, list(range(48, 56)))
    A("s_lshl_b32 s64, s51, 5")
    A(f"s_add_u32 s64, s64, {2*CH}")
    A("v_mov_b32 v3, s64")
    A("s_mov_b32 exec_lo, 0")
    A("s_mov_b32 exec_hi, 0x80000000")
    A("ds_write_b128 v3, v[48:51]")
    A("ds_write_b128 v3, v[52:55] offset:16")
    A("s_mov_b64 exec, -1")
    A.label("K2_EPI")
    for j in range(4):
        A(f"v_cvt_pk_bf16_f32 v{40+j}, v{UF+2*j}, v{UF+2*j+1}")
    for j in range(4):
        A(f"v_lshlrev_b32 v{UF+2*j}, 16, v{40+j}")
        A(f"v_and_b32 v{UF+2*j+1}, 0xffff0000, v{40+j}")
    A("s_waitcnt lgkmcnt(0)")
    A("s_barrier")
    A(f"ds_read_b128 v[32:35], v14 offset:{O_Y}")
    A(f"ds_read_b128 v[36:39], v14 offset:{O_Y+16}")
    A("s_waitcnt lgkmcnt(0)")
    Y = lambda r: 39 - r
    for r in range(8):
        A(f"v_mul_f32 v{Y(r)}, s49, v{Y(r)}")
    for j in range(4):
        A(f"v_cvt_pk_bf16_f32 v{40+j}, v{Y(2*j)}, v{Y(2*j+1)}")
    for j in range(4):
        A(f"v_lshlrev_b32 v{32+2*j}, 16, v{40+j}")
        A(f"v_and_b32 v{33+2*j}, 0xffff0000, v{40+j}")
    for r in range(8):
        A(f"v_add_f32 v{32+r}, v{32+r}, v{UF+r}")
    for j in range(4):
        A(f"v_cvt_pk_bf16_f32 v{40+j}, v{32+2*j}, v{33+2*j}")
    for j in range(4):
        A(f"v_lshlrev_b32 v{32+2*j}, 16, v{40+j}")
        A(f"v_and_b32 v{33+2*j}, 0xffff0000, v{40+j}")
    for r in range(8):
        A(f"v_add_f32 v{32+r}, v{32+r}, v{XF+r}")
    for j in range(4):
        A(f"v_cvt_pk_bf16_f32 v{40+j}, v{32+2*j}, v{33+2*j}")
    A(f"buffer_store_dwordx4 v[40:43], v15, s[12:15], s53 offen{STORE_FLAGS['ht']}")
    if diag:
        A("s_cmp_lg_u32 s5, 0")
        A("s_cbranch_scc1 K2_NOST")
        A("s_waitcnt vmcnt(0)")
        stamp(A, 1, 3, diag=diag)
        A.label("K2_NOST")
    A("s_cmp_lg_u32 s5, 4")
    A("s_cbranch_scc1 K2_END")
    A("s_cmp_ge_u32 s70, 28")
    A("s_cbranch_scc1 K2_END")
    A("v_lshlrev_b32 v3, 2, v1")
    A(f"v_add_u32 v4, {2*CH}, v3")
    A("s_mov_b64 exec, 0xff")
    for w in range(4):
        A(f"ds_read_b32 v{48+w}, v4 offset:{32*w}")
    A("s_lshl_b32 s65, s69, 5")
    A(f"s_add_u32 s65, s65, 0x{WS_CS:x}")
    A("s_waitcnt lgkmcnt(0)")
    A("v_add_f32 v48, v48, v49")
    A("v_add_f32 v50, v50, v51")
    A("v_add_f32 v48, v48, v50")
    A("buffer_store_dword v48, v3, s[12:15], s65 offen")
    if diag:
        A("s_waitcnt vmcnt(0)")
        stamp(A, 1, 4, diag=diag)
    A.label("K2_END")
    A("s_endpgm")
    return kernel_desc(name, 240)
```

```python
from common import *
import os

NHS = 4
HS = 16384
W1B = NHS * HS
WS1 = 64 * 224
K3_LDS = W1B + 6 * WS1
K3_THREADS = 512
W1MID = int(os.environ.get('K3_W1MID', 4))
K3_PF_AT = int(os.environ.get('K3_PF_AT', 5))

def gen_k3(A, name, diag=False):
    kernel_begin(A, name)
    load_kernargs(A)
    A("s_cmp_ge_u32 s2, 256")
    A("s_cbranch_scc1 K3_END")
    A("v_and_b32 v1, 63, v0")
    A("v_lshrrev_b32 v2, 6, v0")
    A("s_and_b32 s3, s2, 7")
    A("s_lshr_b32 s4, s2, 3")
    A("v_readfirstlane_b32 s5, v2")
    A("s_lshl_b32 s3, s3, 1")
    A("s_lshr_b32 s6, s4, 4")
    A("s_add_u32 s3, s3, s6")
    A("s_and_b32 s4, s4, 15")
    A("s_lshl_b32 s42, s3, 17")
    A(f"s_add_u32 s42, s42, 0x{WS_HT:x}")
    A("s_cmp_lt_u32 s5, 4")
    A("s_cbranch_scc1 K3_COMPUTE")
    A("s_sub_u32 s5, s5, 4")
    A("v_lshrrev_b32 v4, 4, v1")
    A("s_lshl_b32 s45, s5, 2")
    A("v_add_u32 v4, s45, v4")
    A("v_and_b32 v5, 7, v4")
    A("v_bfe_u32 v6, v1, 1, 3")
    A("v_xor_b32 v6, v6, v5")
    A("v_and_b32 v7, 1, v1")
    A("v_lshlrev_b32 v7, 4, v7")
    A("v_lshl_add_u32 v7, v6, 5, v7")
    A("v_lshl_add_u32 v8, v4, 8, v7")
    A("s_lshl_b32 s46, s5, 10")
    A("v_lshlrev_b32 v3, 7, v1")
    A("v_cmp_gt_u32 vcc, 16, v1")
    A("v_mov_b32 v9, 0x40000000")
    A("s_lshl_b32 s44, s4, 13")
    A("s_lshl_b32 s45, s5, 11")
    A("v_cndmask_b32 v3, v9, v3, vcc")
    A("s_add_u32 s44, s44, s45")
    A("s_add_u32 s44, s44, s42")
    A("s_waitcnt lgkmcnt(0)")
    srd(A, 12, S_WS, WS_SIZE)
    vt = VmTrack()
    def hdma(c):
        for i in range(4):
            A(f"s_add_u32 m0, s46, {(c % NHS)*HS + i*4096}")
            A(f"s_add_u32 s45, s42, {c*16384 + i*4096}")
            A("buffer_load_dwordx4 v8, s[12:15], s45 offen lds")
        vt.issue(("h", c), 4)
    A("buffer_load_dword v9, v3, s[12:15], s44 offen")
    vt.issue("pf")
    srd(A, 8, S_W1, 512 * 1792 * 2)
    A("s_mul_i32 s43, s4, 224")
    A("s_lshl_b32 s45, s5, 6")
    A("v_add_u32 v4, s45, v1")
    def wdma(D, first=False, js=range(7)):
        for j in js:
            if first:
                A(f"v_mul_u32_u24 v5, 18725, v4")
                A(f"v_lshrrev_b32 v5, 18, v5")
                A(f"v_mul_u32_u24 v6, {3584 - 14*16}, v5")
                A(f"v_lshl_add_u32 v{10+j}, v4, 4, v6")
                if j < 6: A("v_add_u32 v4, 256, v4")
            A(f"s_add_u32 m0, s46, {W1B + (D % 3)*2*WS1 + j*4096}")
            A(f"s_add_u32 s45, s43, {D*128*3584}")
            A(f"buffer_load_dwordx4 v{10+j}, s[8:11], s45 offen lds")
        vt.issue(("w", D), len(js))
    wdma(0, True)
    wdma(1, js=range(W1MID))
    hdma(0)
    wdma(1, js=range(W1MID, 7))
    hdma(1)
    A("v_and_b32 v4, 7, v1")
    A("s_lshr_b32 s45, s4, 1")
    A("v_xor_b32 v4, s45, v4")
    A("v_lshlrev_b32 v4, 5, v4")
    A("v_lshl_add_u32 v4, v1, 8, v4")
    A("s_and_b32 s45, s4, 1")
    A("s_lshl_b32 s45, s45, 4")
    A("v_add_u32 v4, s45, v4")
    for i in range(16):
        A(f"v_mov_b32 v{32+i}, 0")
    for c in range(8):
        n = min(vt.count_after(("h", c)), vt.count_after(("w", c // 2)))
        A(f"s_waitcnt vmcnt({n}) lgkmcnt(0)")
        A("s_barrier")
        if os.environ.get("K3_ST"):
            stamp(A, 4, c, diag=diag); vt.issue("st", 1 if diag else 0)
        if c + 2 <= 7: hdma(c + 2)
        if c in (1, 3): wdma(2 + c // 2, js=range(3))
        if c in (2, 4): wdma(2 + (c - 1) // 2, js=range(3, 7))
        lab = A.newlabel("K3S")
        A("s_cmp_lg_u32 s5, 3")
        A(f"s_cbranch_scc1 {lab}")
        A(f"ds_read_b128 v[48:51], v4 offset:{(c % NHS)*HS}")
        A("s_waitcnt lgkmcnt(0)")
        for q in range(4):
            A(f"v_lshlrev_b32 v{24+2*q}, 16, v{48+q}")
            A(f"v_and_b32 v{25+2*q}, 0xffff0000, v{48+q}")
        for r in range(8):
            A(f"v_add_f32 v{32+r}, v{32+r}, v{24+r}")
            A(f"v_fmac_f32 v{40+r}, v{24+r}, v{24+r}")
        A.label(lab)
        if c == K3_PF_AT:
            pf_setup(A, 72, 76)
            pf_issue(A, PF["k3"], 5, 72, 76, 20, 21, 80)
            vt.issue("pf2", sum(len(set(e[0] for e in r if e)) for r in PF["k3"]))
    A("s_cmp_lg_u32 s5, 3")
    A("s_cbranch_scc1 K3_END")
    wave_reduce(A, list(range(32, 48)))
    A(f"s_mov_b32 s48, {fhex(1/512)}")
    for r in range(8):
        A(f"v_mul_f32 v{32+r}, s48, v{32+r}")
    for r in range(8):
        A(f"v_mul_f32 v{32+r}, v{32+r}, v{32+r}")
    for r in range(8):
        A(f"v_fma_f32 v{40+r}, v{40+r}, s48, -v{32+r}")
    for r in range(8):
        A(f"v_max_f32 v{40+r}, 0, v{40+r}")
    def rnd8():
        for j in range(4):
            A(f"v_cvt_pk_bf16_f32 v{32+j}, v{40+2*j}, v{41+2*j}")
        for j in range(4):
            A(f"v_lshlrev_b32 v{40+2*j}, 16, v{32+j}")
            A(f"v_and_b32 v{41+2*j}, 0xffff0000, v{32+j}")
    rnd8()
    for r in range(8):
        A(f"v_add_f32 v{40+r}, {fhex(1e-5)}, v{40+r}")
    rnd8()
    for r in range(8):
        A(f"v_sqrt_f32 v{40+r}, v{40+r}")
    A("s_nop 0")
    rnd8()
    for r in range(8):
        A(f"v_rcp_f32 v{40+r}, v{40+r}")
    A("s_lshl_b32 s44, s3, 9")
    A("s_lshl_b32 s45, s4, 5")
    A("s_add_u32 s44, s44, s45")
    A(f"s_add_u32 s44, s44, 0x{WS_RS:x}")
    A("s_mov_b32 exec_lo, 0")
    A("s_mov_b32 exec_hi, 0x80000000")
    A("buffer_store_dwordx4 v[40:43], off, s[12:15], s44")
    A("buffer_store_dwordx4 v[44:47], off, s[12:15], s44 offset:16")
    A("s_endpgm")

    A.label("K3_COMPUTE")
    A("v_lshrrev_b32 v3, 4, v1")
    A("v_lshlrev_b32 v10, 4, v3")
    A("s_mul_i32 s45, s4, 448")
    A(f"s_add_u32 s45, s45, 0x{WS_CS:x}")
    A("v_lshrrev_b32 v4, 2, v1")
    A("v_and_b32 v5, 7, v4")
    A("v_and_b32 v6, 3, v1")
    A("v_lshlrev_b32 v6, 3, v6")
    A("s_lshl_b32 s46, s5, 1")
    A("v_xor_b32 v7, s46, v5")
    A("v_lshlrev_b32 v7, 5, v7")
    A("v_lshl_add_u32 v7, v4, 8, v7")
    A("v_add_u32 v12, v7, v6")
    A("v_xor_b32 v13, 32, v12")
    A("v_mul_u32_u24 v14, 224, v4")
    A("v_add_u32 v14, v14, v6")
    A(f"v_add_u32 v14, {W1B}, v14")
    A(f"v_add_u32 v15, {3*WS1}, v14")
    CS, FR, ACC, SS, ONES = 16, 44, 116, 172, 180
    for i in range(4):
        A(f"v_mov_b32 v{ONES+i}, 0x3f803f80")
    A("v_lshlrev_b32 v6, 4, v1")
    A("s_lshl_b32 s46, s3, 3")
    A("s_lshl_b32 s47, s5, 1")
    A("s_add_u32 s46, s46, s47")
    A(f"s_mul_i32 s46, s46, {56*1024}")
    A("s_mul_i32 s47, s4, 7")
    A("s_lshr_b32 s47, s47, 1")
    A("s_lshl_b32 s47, s47, 10")
    A("s_add_u32 s46, s46, s47")
    A(f"s_add_u32 s46, s46, 0x{WS_HH:x}")
    A(f"s_add_u32 s47, s46, {56*1024}")
    A("s_waitcnt lgkmcnt(0)")
    stamp(A, 2, 0, diag=diag)
    srd(A, 12, S_WS, WS_SIZE)
    for ft in range(7):
        A(f"buffer_load_dwordx4 v[{CS+4*ft}:{CS+4*ft+3}], v10, s[12:15], s45 offen offset:{64*ft}")
    def reads(st):
        c, ks = divmod(st, 2)
        buf = FR + 36 * ks
        ws = c % 6
        out = []
        for i in range(9):
            for hf in range(2):
                r = buf + 4 * i + 2 * hf
                if i < 2:
                    out.append(f"ds_read_b64_tr_b16 v[{r}:{r+1}], v{12+i} offset:{(c % NHS)*HS + (32*ks+16*hf)*256}")
                else:
                    out.append(f"ds_read_b64_tr_b16 v[{r}:{r+1}], v{14 + ws//3} offset:{(ws%3)*WS1 + (32*ks+16*hf)*224 + 32*(i-2)}")
        return out
    FRONT = int(os.environ.get("K3_FRONT", 6))
    def step(st, rd, known, front):
        buf = FR + 36 * (st % 2)
        ms = []
        def m(d, a_, b_):
            cin = "0" if st == 0 else f"v[{d}:{d+3}]"
            return f"v_mfma_f32_16x16x32_bf16 v[{d}:{d+3}], v[{a_}:{a_+3}], v[{b_}:{b_+3}], {cin}"
        for lt in range(2):
            ms.append((m(SS + 4 * lt, ONES, buf + 4 * lt), 2 + 2 * lt))
        for ft in range(7):
            for lt in range(2):
                ms.append((m(ACC + 8 * ft + 4 * lt, buf + 8 + 4 * ft, buf + 4 * lt), 6 + 2 * ft))
        issued = ri = 0
        for i, (mm, need) in enumerate(ms):
            if need > known:
                n = min(15, 18 - need + issued)
                A(f"s_waitcnt lgkmcnt({n})")
                known = need
            if not os.environ.get('K3_NOMFMA'): A(mm)
            k = 2 if i < front else 1
            for _ in range(k):
                if ri < len(rd):
                    if not os.environ.get('K3_NORD'): A(rd[ri])
                    ri += 1; issued += 1
    A("s_barrier")
    stamp(A, 2, 1, diag=diag)
    for i, ln in enumerate(reads(0)):
        A(ln)
        if i == 11: A("s_waitcnt lgkmcnt(6)")
    for c in range(8):
        step(2 * c, reads(2 * c + 1), 0, FRONT)
        if c < 7:
            A("s_waitcnt lgkmcnt(0)")
            A("s_barrier")
            step(2 * c + 1, reads(2 * c + 2), 99, 2)
        else:
            step(2 * c + 1, [], 0, 2)
    stamp(A, 2, 2, diag=diag)
    A(f"v_mul_f32 v44, {fhex(1/512)}, v{SS}")
    A(f"v_mul_f32 v45, {fhex(1/512)}, v{SS+4}")
    A("v_cvt_pk_bf16_f32 v46, v44, v45")
    A("v_lshlrev_b32 v48, 16, v46")
    A("v_and_b32 v50, 0xffff0000, v46")
    A("s_waitcnt vmcnt(0)")
    OUT = 56
    sfx = STORE_FLAGS["h"]
    A("s_bitcmp1_b32 s4, 0")
    A("s_cbranch_scc1 K3_ODD")
    for par in range(2):
        if par: A.label("K3_ODD")
        for lt in range(2):
            mr = 48 + 2 * lt
            o = OUT + 14 * lt
            def fin(ft):
                ac = ACC + 8 * ft + 4 * lt
                for h in range(2):
                    A(f"v_pk_fma_f32 v[{ac+2*h}:{ac+2*h+1}], v[{CS+4*ft+2*h}:{CS+4*ft+2*h+1}], v[{mr}:{mr+1}], v[{ac+2*h}:{ac+2*h+1}] op_sel:[0,0,0] op_sel_hi:[1,0,1] neg_lo:[0,1,0] neg_hi:[0,1,0]")
            def fin2(ft):
                ac = ACC + 8 * ft + 4 * lt
                for h in range(2):
                    A(f"v_cvt_pk_bf16_f32 v{o+2*ft+h}, v{ac+2*h}, v{ac+2*h+1}")
                for h in range(2):
                    A(f"v_pk_max_i16 v{o+2*ft+h}, v{o+2*ft+h}, 0")
            groups = [(0, 1), (2, 3), (4, 5), (6,)] if par == 0 else [(0,), (1, 2), (3, 4), (5, 6)]
            for gi, grp in enumerate(groups):
                for ft in grp: fin(ft)
                for ft in grp: fin2(ft)
                r = o + 2 * grp[0]
                if len(grp) == 2:
                    A(f"buffer_store_dwordx4 v[{r}:{r+3}], v6, s[12:15], s{46+lt} offen offset:{1024*gi}{sfx}")
                else:
                    A(f"buffer_store_dwordx2 v[{r}:{r+1}], v6, s[12:15], s{46+lt} offen offset:{1024*gi + 8*par}{sfx}")
        if diag:
            A("s_waitcnt vmcnt(0)")
        stamp(A, 2, 3, diag=diag)
        A("s_endpgm")
    A.label("K3_END")
    A("s_endpgm")
    return kernel_desc(name, 192)
```

```python
from common import *
import os

NW2 = 5
NH = 4
HBASE = NW2 * 16384
RES = HBASE + NH * 16384
K4_LDS = RES + 8192
K4_THREADS = 512
HPRE = int(os.environ.get("K4_HPRE", 2))
NST = 14
PFA = int(os.environ.get('K4_PFA', 6))
WMID = int(os.environ.get('K4_WMID', 4))

def gen_k4(A, name, diag=False):
    kernel_begin(A, name)
    load_kernargs(A)
    A("s_cmp_ge_u32 s2, 256")
    A("s_cbranch_scc1 K4_END")
    A("v_and_b32 v1, 63, v0")
    A("v_lshrrev_b32 v2, 6, v0")
    A("s_and_b32 s3, s2, 7")
    A("s_lshr_b32 s4, s2, 3")
    A("v_readfirstlane_b32 s5, v2")
    A("s_lshl_b32 s3, s3, 2")
    A("s_lshr_b32 s6, s4, 3")
    A("s_add_u32 s3, s3, s6")
    A("s_and_b32 s4, s4, 7")
    A("s_cmp_lt_u32 s5, 4")
    A("s_cbranch_scc1 K4_COMPUTE")
    A("v_lshrrev_b32 v3, 3, v1")
    A("v_bfe_u32 v4, v1, 1, 2")
    A("v_bfe_u32 v5, v1, 4, 2")
    A("v_xor_b32 v4, v4, v5")
    A("v_and_b32 v5, 1, v1")
    A("v_lshlrev_b32 v5, 4, v5")
    A("v_lshl_add_u32 v5, v4, 5, v5")
    A("s_sub_u32 s5, s5, 4")
    A("v_lshl_add_u32 v8, v3, 10, v5")
    A("v_lshl_add_u32 v9, v3, 8, v5")
    A("v_lshlrev_b32 v10, 4, v1")
    A("v_lshrrev_b32 v14, 2, v1")
    A("v_and_b32 v15, 3, v1")
    A("v_lshlrev_b32 v15, 7, v15")
    A("v_lshl_add_u32 v15, v14, 12, v15")
    A("v_mov_b32 v6, 0x40000000")
    A(f"v_cmp_gt_u32 vcc, {PFA}, v14")
    A(f"s_mul_i32 s43, s3, {4*56*1024}")
    A(f"s_add_u32 s43, s43, 0x{WS_HH:x}")
    A("v_cndmask_b32 v11, v6, v15, vcc")
    A(f"v_cmp_le_u32 vcc, {PFA}, v14")
    A("v_cmp_gt_u32 s[60:61], 14, v14")
    A("s_lshl_b32 s49, s4, 9")
    A("s_and_b64 vcc, vcc, s[60:61]")
    A("v_cndmask_b32 v12, v6, v15, vcc")
    A(f"s_mul_i32 s44, s5, {56*1024}")
    A("s_add_u32 s43, s43, s44")
    A("s_add_u32 s49, s49, s43")
    A("s_lshl_b32 s44, s5, 12")
    A("s_lshl_b32 s42, s4, 7")
    A("s_lshl_b32 s45, s5, 15")
    A("s_add_u32 s42, s42, s45")
    A("s_lshl_b32 s45, s4, 14")
    A("s_lshr_b32 s46, s3, 1")
    A("s_lshl_b32 s46, s46, 17")
    A("s_add_u32 s45, s45, s46")
    A("s_and_b32 s46, s3, 1")
    A("s_lshl_b32 s46, s46, 7")
    A("s_add_u32 s45, s45, s46")
    A("s_add_u32 s45, s45, s44")
    A(f"s_add_u32 s45, s45, 0x{WS_HT:x}")
    A("s_lshl_b32 s46, s5, 11")
    A("s_waitcnt lgkmcnt(0)")
    srd(A, 12, S_WS, WS_SIZE)
    vt = VmTrack()
    def hdma(s_):
        A(f"s_add_u32 m0, s44, {HBASE + (s_ % NH)*16384}")
        A(f"s_add_u32 s47, s43, {s_*4096}")
        for w in range(4):
            A(f"buffer_load_dwordx4 v10, s[12:15], s47 offen offset:{w*1024} lds")
        vt.issue(("h", s_), 4)
    def wdma(s_):
        for i in range(4):
            A(f"s_add_u32 m0, s44, {(s_ % NW2)*16384 + i*1024}")
            A(f"s_add_u32 s47, s42, {(s_*128+i*8)*1024}")
            A("buffer_load_dwordx4 v8, s[8:11], s47 offen lds")
        vt.issue(("w", s_), 4)
    A("buffer_load_dword v16, v11, s[12:15], s49 offen")
    vt.issue("pf")
    srd(A, 8, S_W2, 512 * 1792 * 2)
    for s_ in range(WMID): wdma(s_)
    hdma(0)
    for s_ in range(WMID, NW2): wdma(s_)
    for s_ in range(1, HPRE): hdma(s_)
    hiss = HPRE
    for s_ in range(NST):
        n = min(vt.count_after(("h", s_)), vt.count_after(("w", s_)))
        A(f"s_waitcnt vmcnt({n})")
        A("s_barrier")
        if os.environ.get("K4_ST") and s_ < 8:
            stamp(A, 5, s_, diag=diag); vt.issue("st", 1 if diag else 0)
        if s_ == 0:
            A("buffer_load_dword v16, v12, s[12:15], s49 offen")
            vt.issue("pf")
        for _ in range(2):
            if hiss < NST and hiss <= max(s_ - 1, -1 if s_ else -1) + NH and (s_ >= 1 or hiss < NH - 1):
                hdma(hiss); hiss += 1
        if s_ >= 1 and s_ - 1 + NW2 < NST: wdma(s_ - 1 + NW2)
        if s_ == 10:
            for i in range(2):
                A(f"s_add_u32 m0, s46, {RES + i*1024}")
                A(f"s_add_u32 s47, s45, {i*8*256}")
                A("buffer_load_dwordx4 v9, s[12:15], s47 offen lds")
            vt.issue("res", 2)
    A("s_waitcnt vmcnt(0)")
    A("s_endpgm")

    A.label("K4_COMPUTE")
    A("s_and_b32 s6, s5, 1")
    A("s_lshr_b32 s7, s5, 1")
    A("v_lshrrev_b32 v3, 2, v1")
    A("v_bfe_u32 v4, v1, 3, 2")
    A("v_and_b32 v5, 3, v1")
    A("v_lshlrev_b32 v5, 3, v5")
    A("v_lshl_add_u32 v5, v3, 7, v5")
    A("s_lshl_b32 s44, s6, 1")
    A("v_xor_b32 v6, s44, v4")
    A("v_lshl_add_u32 v8, v6, 5, v5")
    A("v_xor_b32 v9, 32, v8")
    A("v_add_u32 v10, 0xc000, v8")
    A("v_add_u32 v11, 0xc000, v9")
    A("s_lshl_b32 s44, s7, 1")
    A("v_xor_b32 v6, s44, v4")
    A("v_lshl_add_u32 v12, v6, 5, v5")
    A("s_lshl_b32 s44, s6, 12")
    A(f"s_add_u32 s44, s44, {RES}")
    A("v_add_u32 v12, s44, v12")
    A("v_xor_b32 v13, 32, v12")
    A("v_lshlrev_b32 v3, 4, v1")
    A("s_lshl_b32 s44, s7, 13")
    A(f"s_add_u32 s44, s44, {HBASE}")
    A("v_add_u32 v16, s44, v3")
    A("v_and_b32 v4, 15, v1")
    A("v_lshrrev_b32 v6, 4, v1")
    A("v_lshlrev_b32 v6, 3, v6")
    A("v_lshl_add_u32 v6, v4, 10, v6")
    A("v_lshlrev_b32 v4, 2, v4")
    A("s_lshl_b32 s47, s3, 16")
    A("s_lshl_b32 s48, s7, 15")
    A("s_add_u32 s47, s47, s48")
    A("s_lshl_b32 s48, s4, 7")
    A("s_add_u32 s47, s47, s48")
    A("s_lshl_b32 s48, s6, 6")
    A("s_add_u32 s47, s47, s48")
    A("s_add_u32 s48, s47, 0x4000")
    A("s_lshl_b32 s55, s3, 8")
    A("s_lshl_b32 s50, s7, 7")
    A("s_add_u32 s55, s55, s50")
    A(f"s_add_u32 s55, s55, 0x{WS_RS:x}")
    A("s_waitcnt lgkmcnt(0)")
    stamp(A, 3, 0, diag=diag)
    srd(A, 12, S_WS, WS_SIZE)
    srd(A, 56, S_OUT, 2048 * 512 * 2)
    A("buffer_load_dword v17, v4, s[12:15], s55 offen")
    A("buffer_load_dword v18, v4, s[12:15], s55 offen offset:64")
    FR = 20
    ACC = FR + 128
    RR = ACC + 16
    def reads(s_):
        buf = FR + 64 * (s_ % 2)
        sl = s_ % NW2
        out = []
        for j in range(4):
            b = buf + 16 * j
            for i in range(2):
                ad = (8 if sl < 3 else 10) + i
                off = (sl % 3) * 16384 + 4096 * j
                out.append(f"ds_read_b64_tr_b16 v[{b+4*i}:{b+4*i+1}], v{ad} offset:{off}")
                out.append(f"ds_read_b64_tr_b16 v[{b+4*i+2}:{b+4*i+3}], v{ad} offset:{off+2048}")
                out.append(f"ds_read_b128 v[{b+8+4*i}:{b+11+4*i}], v16 offset:{(s_ % NH)*16384 + i*4096 + j*1024}")
        return out
    A("s_barrier")
    stamp(A, 3, 1, diag=diag)
    for k, ln in enumerate(reads(0)):
        A(ln)
        if k == 13: A("s_waitcnt lgkmcnt(4)")
    for s_ in range(NST):
        if s_ + 1 < NST:
            rd = reads(s_ + 1)
        else:
            rd = [f"ds_read_b64_tr_b16 v[{RR+4*q+2*i}:{RR+4*q+2*i+1}], v{12+q} offset:{2048*i}" for q in range(2) for i in range(2)]
        A("s_waitcnt lgkmcnt(0)")
        A("s_barrier")
        buf = FR + 64 * (s_ % 2)
        k = 0
        for j in range(4):
            b = buf + 16 * j
            for q in range(2):
                for i in range(2):
                    ac = ACC + 8 * q + 4 * i
                    cin = "0" if (s_ == 0 and j == 0) else f"v[{ac}:{ac+3}]"
                    A(f"v_mfma_f32_16x16x32_bf16 v[{ac}:{ac+3}], v[{b+4*i}:{b+4*i+3}], v[{b+8+4*q}:{b+11+4*q}], {cin}")
                    for _ in range(2):
                        if k < len(rd): A(rd[k])
                        k += 1
    stamp(A, 3, 2, diag=diag)
    sfx = STORE_FLAGS["out"]
    A("s_waitcnt vmcnt(0) lgkmcnt(0)")
    for t in range(8):
        A(f"v_lshlrev_b32 v{20+2*t}, 16, v{RR+t}")
        A(f"v_and_b32 v{21+2*t}, 0xffff0000, v{RR+t}")
    for q in range(2):
        for j in range(8):
            A(f"v_mul_f32 v{ACC+8*q+j}, v{ACC+8*q+j}, v{17+q}")
        for j in range(4):
            A(f"v_cvt_pk_bf16_f32 v{40+j}, v{ACC+8*q+2*j}, v{ACC+8*q+2*j+1}")
        for j in range(4):
            A(f"v_lshlrev_b32 v{ACC+8*q+2*j}, 16, v{40+j}")
            A(f"v_and_b32 v{ACC+8*q+2*j+1}, 0xffff0000, v{40+j}")
        for j in range(8):
            A(f"v_add_f32 v{ACC+8*q+j}, v{ACC+8*q+j}, v{20+8*q+j}")
        for j in range(4):
            A(f"v_cvt_pk_bf16_f32 v{44+4*q+j}, v{ACC+8*q+2*j}, v{ACC+8*q+2*j+1}")
        for i in range(2):
            A(f"buffer_store_dwordx2 v[{44+4*q+2*i}:{45+4*q+2*i}], v6, s[56:59], s{47+q} offen offset:{32*i}{sfx}")
    if diag:
        A("s_waitcnt vmcnt(0)")
    stamp(A, 3, 3, diag=diag)
    A.label("K4_END")
    A("s_endpgm")
    return kernel_desc(name, 192)
```

```python
import sys, importlib
from common import *
import k1, k2
HDR = open("sequential_preLN__ssm_conv_s4d__dense_activation_relu__prompt.s.ref").read().split("; Override launch")[0]

def build(out, diag=False, upto=4, extra=()):
    A = Asm()
    descs = []
    launches = []
    descs.append(k1.gen_k1(A, "k1_kernel", diag=130 if diag else False))
    launches.append(f"; @launch kernel=k1_kernel grid=({k1.K1_GRID},1,1) block=({k1.K1_THREADS},1,1) lds={k1.K1_LDS}")
    if upto >= 2:
        descs.append(k2.gen_k2(A, "k2_kernel", diag=234 if diag else False))
        launches.append(f"; @launch kernel=k2_kernel grid=(256,1,1) block=({k2.K2_THREADS},1,1) lds={k2.K2_LDS}")
    if upto >= 3:
        import k3
        descs.append(k3.gen_k3(A, "k3_kernel", diag=186 if diag else False))
        launches.append(f"; @launch kernel=k3_kernel grid=(256,1,1) block=({k3.K3_THREADS},1,1) lds={k3.K3_LDS}")
    if upto >= 4:
        import k4
        descs.append(k4.gen_k4(A, "k4_kernel", diag=186 if diag else False))
        launches.append(f"; @launch kernel=k4_kernel grid=(256,1,1) block=({k4.K4_THREADS},1,1) lds={k4.K4_LDS}")
    txt = HDR + "\n".join(launches) + "\n" + '.amdgcn_target "amdgcn-amd-amdhsa--gfx950"\n.text\n' + A.text() + '.section .rodata,"a"\n' + "".join(descs)
    open(out, "w").write(txt)

if __name__ == "__main__":
    out = sys.argv[1]
    diag = "diag" in sys.argv
    if "dbg" in sys.argv: DBGSTAMP[0] = True
    upto = 4
    for x in sys.argv:
        if x.startswith("upto="): upto = int(x[5:])
    build(out, diag, upto)
```
